```python
import torch

def _softmax(x, axis=-1):
    return torch.softmax(x, dim=axis)
def _gelu(x):
    return torch.nn.functional.gelu(x, approximate="tanh")
def _silu(x):
    return torch.nn.functional.silu(x)
def _sigmoid(x):
    return torch.sigmoid(x)
def _layernorm(x, axis=-1, eps=1e-5):
    m = x.mean(dim=axis, keepdim=True)
    v = x.var(dim=axis, keepdim=True, unbiased=False)
    return (x - m) / torch.sqrt(v + eps)
def _scatter_add(tgt, idx, src, axis=0):
    return tgt.clone().index_add_(axis, idx, src)
def _segment_sum(src, seg, n):
    out = torch.zeros((n,) + src.shape[1:], dtype=src.dtype)
    return out.index_add_(0, seg, src)
def _pad(x, pw):
    flat = tuple(v for pair in reversed(pw) for v in pair)
    return torch.nn.functional.pad(x, flat)

kernel_name = 'gated_mix__mha_block_cached__dense_activation_gelu__decode'

def setup_inputs():

    _w = (lambda a: (lambda t: t.to(torch.bfloat16) if t.is_floating_point() else t)(torch.as_tensor(a)))
    def _A_setup():
        B, Sq, D = 2, 1, 448
        H, Sk, Dh = 16, 4096, 256
        return {
            "x": _w((lambda *s: torch.randn(*s, dtype=torch.bfloat16) * 0.05)(B, Sq, D)),
            "k_cache": _w((lambda *s: torch.randn(*s, dtype=torch.bfloat16) * 6.4)(B, H, Sk, Dh)),
            "v_cache": _w((lambda *s: torch.randn(*s, dtype=torch.bfloat16) * 0.4)(B, H, Sk, Dh)),
            "wq": _w((lambda *s: torch.randn(*s, dtype=torch.bfloat16) * 6.4)(D, H * Dh) * (D ** -0.5)),
            "wo": _w((lambda *s: torch.randn(*s, dtype=torch.bfloat16) * 0.4)(H * Dh, D) * ((H * Dh) ** -0.5)),
        }
    _A_in = _A_setup()

    def _B_setup():
        B, S, D, F = 2, 1, 448, 1792
        return {
            "x": _w((lambda *s: torch.randn(*s, dtype=torch.bfloat16) * 0.05)(B, S, D)),
            "w1": _w((lambda *s: torch.randn(*s, dtype=torch.bfloat16) * 3.2)(D, F) * (D ** -0.5)),
            "b1": _w((lambda *s: torch.randn(*s, dtype=torch.bfloat16) * 3.2)(F) * 0.01),
            "w2": _w((lambda *s: torch.randn(*s, dtype=torch.bfloat16) * 0.4)(F, D) * (F ** -0.5)),
            "b2": _w((lambda *s: torch.randn(*s, dtype=torch.bfloat16) * 0.8)(D) * 0.01),
        }
    _B_in = _B_setup()

    return {
        "A_x": _A_in["x"],
        "A_k_cache": _A_in["k_cache"],
        "A_v_cache": _A_in["v_cache"],
        "A_wq": _A_in["wq"],
        "A_wo": _A_in["wo"],
        "B_x": _B_in["x"],
        "B_w1": _B_in["w1"],
        "B_b1": _B_in["b1"],
        "B_w2": _B_in["w2"],
        "B_b2": _B_in["b2"],
        "gate_w": _w((lambda *s: torch.randn(*s, dtype=torch.bfloat16) * 0.1)(448) * 16.0),
    }

def reference(A_x, A_k_cache, A_v_cache, A_wq, A_wo, B_x, B_w1, B_b1, B_w2, B_b2, gate_w):
    def _A_ref(x, k_cache, v_cache, wq, wo):
        B, Sq, D = x.shape
        H, Dh = 16, 256
        q = (lambda x, *d: x.permute(*d))((x @ wq).reshape(B, Sq, H, Dh), 0, 2, 1, 3)
        scores = torch.einsum("bhqd,bhkd->bhqk", q, k_cache) * (Dh ** -0.5)
        p = _softmax(scores, axis=-1)
        o = torch.einsum("bhqk,bhkd->bhqd", p, v_cache)
        return (lambda x, *d: x.permute(*d))(o, 0, 2, 1, 3).reshape(B, Sq, H * Dh) @ wo

    def _B_ref(x, w1, b1, w2, b2):
        h = torch.einsum("bsd,df->bsf", x, w1) + b1
        h = _gelu(h)
        return torch.einsum("bsf,fd->bsd", h, w2) + b2

    x = A_x
    g = _sigmoid((x * gate_w).sum(-1, keepdims=True))
    a = _A_ref(x, A_k_cache, A_v_cache, A_wq, A_wo)
    b = _B_ref(x, B_w1, B_b1, B_w2, B_b2)
    return g * a + (1 - g) * b
```

```python
import re

RE_VR = re.compile(r'^v\[(\d+):(\d+)\]$')
RE_V = re.compile(r'^v(\d+)$')
RE_SR = re.compile(r'^s\[(\d+):(\d+)\]$')
RE_S = re.compile(r'^s(\d+)$')

TRANS = ('v_exp_f32', 'v_log_f32', 'v_rcp_f32', 'v_rsq_f32', 'v_sqrt_f32', 'v_sin_f32', 'v_cos_f32')


def regs_of(tok):
    tok = tok.strip()
    m = RE_VR.match(tok)
    if m:
        return [('v', i) for i in range(int(m.group(1)), int(m.group(2)) + 1)]
    m = RE_V.match(tok)
    if m:
        return [('v', int(m.group(1)))]
    m = RE_SR.match(tok)
    if m:
        return [('s', i) for i in range(int(m.group(1)), int(m.group(2)) + 1)]
    m = RE_S.match(tok)
    if m:
        return [('s', int(m.group(1)))]
    if tok == 'vcc':
        return [('s', 'vcc_lo'), ('s', 'vcc_hi')]
    if tok in ('vcc_lo', 'vcc_hi'):
        return [('s', tok)]
    if tok == 'exec':
        return [('s', 'exec_lo'), ('s', 'exec_hi')]
    if tok in ('exec_lo', 'exec_hi', 'm0'):
        return [('s', tok)]
    return []


class Ins:
    __slots__ = ('text', 'op', 'dst', 'src', 'kind', 'tag', 'optional', 'dpp', 'mods')

    def __init__(self, text, tag=None, optional=False):
        self.text = text
        self.tag = tag
        self.optional = optional
        t = text.split(';')[0].strip()
        parts = t.split(None, 1)
        self.op = parts[0]
        rest = parts[1] if len(parts) > 1 else ''
        rest_clean = re.sub(r'quad_perm:\[[^\]]*\]', 'quad_perm', rest)
        rest_clean = re.sub(r'hwreg\([^)]*\)', 'hwreg', rest_clean)
        ops = [o.strip() for o in rest_clean.split(',')] if rest_clean else []
        toks = []
        mods = ''
        for k, o in enumerate(ops):
            w = o.split()
            if not w:
                continue
            toks.append(w[0])
            if len(w) > 1:
                mods += ' ' + ' '.join(w[1:])
        self.mods = mods
        op = self.op
        self.dpp = ('_dpp' in op)
        R = [regs_of(x) for x in toks]
        flat = lambda L: [r for x in L for r in x]
        dst, src = [], []
        if op.startswith('v_'):
            self.kind = 'valu'
            base = op.replace('_e32', '').replace('_e64', '').replace('_dpp', '')
            if base.startswith('v_permlane') and 'swap' in base:
                dst = R[0] + R[1]
                src = R[0] + R[1]
            elif base.startswith('v_cmp'):
                dst = R[0]
                src = flat(R[1:])
            else:
                dst = R[0]
                src = flat(R[1:])
                if base in ('v_dot2c_f32_bf16', 'v_fmac_f32', 'v_mac_f32') or self.dpp:
                    src = src + R[0]
                if base == 'v_cndmask_b32' and len(toks) == 3:
                    src = src + regs_of('vcc')
        elif op.startswith('buffer_load') or op.startswith('global_load'):
            self.kind = 'vmem_load'
            dst = R[0]
            src = flat(R[1:])
        elif op.startswith('buffer_store') or op.startswith('global_store'):
            self.kind = 'vmem_store'
            src = flat(R)
        elif op.startswith('global_atomic') or op.startswith('buffer_atomic'):
            if ' sc0' in (' ' + mods + ' '):
                self.kind = 'vmem_load'
                dst = R[0]
                src = flat(R[1:])
            else:
                self.kind = 'vmem_store'
                src = flat(R)
        elif op.startswith('ds_read') or op.startswith('ds_swizzle') or op.startswith('ds_bpermute'):
            self.kind = 'ds_load'
            dst = R[0]
            src = flat(R[1:])
        elif op.startswith('ds_'):
            self.kind = 'ds_store'
            src = flat(R)
        elif op.startswith('s_load') or op in ('s_memrealtime', 's_memtime'):
            self.kind = 'smem'
            dst = R[0]
            src = flat(R[1:])
        elif op == 's_waitcnt':
            self.kind = 'waitcnt'
        elif op == 's_nop':
            self.kind = 'nop'
        elif op.startswith('s_cbranch') or op == 's_branch':
            self.kind = 'branch'
            if 'vcc' in op:
                src = regs_of('vcc')
        elif op in ('s_barrier', 's_endpgm', 's_sleep', 's_setprio'):
            self.kind = 'ctl'
        elif op.startswith('s_cmp') or op.startswith('s_bitcmp'):
            self.kind = 'salu'
            src = flat(R)
        elif op.startswith('s_'):
            self.kind = 'salu'
            dst = R[0]
            src = flat(R[1:])
        else:
            raise ValueError('unknown instruction: ' + text)
        self.dst = dst
        self.src = src

    def states(self):
        if self.kind == 'nop':
            return int(self.text.split()[1]) + 1
        return 1

    def store_data(self):
        if self.kind != 'vmem_store':
            return []
        if not ('dwordx4' in self.op or 'dwordx3' in self.op):
            return []
        t = self.text.split(';')[0].split(None, 1)[1]
        toks = [o.strip().split()[0] for o in t.split(',') if o.strip()]
        idx = 0 if self.op.startswith('buffer') else 1
        return regs_of(toks[idx])


class Asm:
    def __init__(self):
        self.items = []

    def __call__(self, text, tag=None, optional=False):
        for ln in text.split('\n'):
            ln = ln.strip()
            if not ln:
                continue
            if ln.startswith(';'):
                self.items.append(('comment', ln))
            else:
                self.items.append(('ins', Ins(ln, tag, optional)))

    def c(self, text):
        self.items.append(('comment', '; ' + text))

    def label(self, name):
        self.items.append(('label', name))

    def save(self, key):
        self.items.append(('save', key))

    def restore(self, key):
        self.items.append(('restore', key))

    def wait_tag(self, tag):
        self.items.append(('wait_tag', tag))

    def assume_drained(self):
        self.items.append(('drained', None))

    def finalize(self):
        out = []
        vm = []
        lg = []
        hist = []
        saved = {}

        def emit(ins):
            out.append('    ' + ins.text)
            hist.append(ins)
            if len(hist) > 12:
                del hist[0]

        def vm_need(idx):
            n = sum(1 for e in vm[idx + 1:] if not e[2])
            return n

        def do_wait(vn, ln):
            parts = []
            if vn is not None:
                vn = min(vn, 63)
                parts.append('vmcnt(%d)' % vn)
            if ln is not None:
                ln = min(ln, 15)
                parts.append('lgkmcnt(%d)' % ln)
            emit(Ins('s_waitcnt ' + ' '.join(parts)))
            apply_wait(vn, ln)

        def apply_wait(vn, ln):
            if vn is not None:
                keep = 0
                cnt = 0
                for e in reversed(vm):
                    if cnt >= vn:
                        break
                    keep += 1
                    if not e[2]:
                        cnt += 1
                del vm[:len(vm) - keep]
            if ln is not None:
                if any(e[1] for e in lg) and ln > 0:
                    pass
                else:
                    del lg[:max(0, len(lg) - ln)]

        for kind, val in self.items:
            if kind == 'comment':
                out.append('    ' + val)
                continue
            if kind == 'label':
                out.append(val + ':')
                continue
            if kind == 'save':
                saved[val] = (list(vm), list(lg), list(hist))
                continue
            if kind == 'restore':
                vm[:], lg[:], hist[:] = [list(x) for x in saved[val]]
                continue
            if kind == 'drained':
                vm.clear()
                lg.clear()
                continue
            if kind == 'wait_tag':
                idx = -1
                for i, e in enumerate(vm):
                    if e[1] == val:
                        idx = i
                if idx >= 0:
                    do_wait(vm_need(idx), None)
                continue
            ins = val
            touched = set(ins.dst) | set(ins.src)
            vn = ln = None
            idx = -1
            for i, e in enumerate(vm):
                if e[0] & touched:
                    idx = i
            if idx >= 0:
                vn = vm_need(idx)
            idx = -1
            for i, e in enumerate(lg):
                if e[0] & touched:
                    idx = i
            if idx >= 0:
                ln = 0 if any(e[1] for e in lg) else len(lg) - 1 - idx
            if vn is not None or ln is not None:
                do_wait(vn, ln)
            if ins.kind in ('ds_load', 'ds_store') and len(lg) >= 15 and not any(e[1] for e in lg):
                do_wait(None, 13)
            if ins.kind == 'waitcnt':
                m = re.search(r'vmcnt\((\d+)\)', ins.text)
                m2 = re.search(r'lgkmcnt\((\d+)\)', ins.text)
                emit(ins)
                apply_wait(int(m.group(1)) if m else None, int(m2.group(1)) if m2 else None)
                continue
            need = 0
            d = 0
            srcv = set(r for r in ins.src if r[0] == 'v')
            srcs = set(r for r in ins.src if r[0] == 's')
            dstv = set(r for r in ins.dst if r[0] == 'v')
            isv = ins.kind == 'valu'
            ismem = ins.kind in ('vmem_load', 'vmem_store', 'ds_load', 'ds_store')
            isvmem = ins.kind in ('vmem_load', 'vmem_store')
            base = ins.op.replace('_e32', '').replace('_e64', '')
            for p in reversed(hist):
                pd = set(p.dst)
                pdv = set(r for r in pd if r[0] == 'v')
                pds = set(r for r in pd if r[0] == 's')
                req = 0
                if p.kind == 'valu':
                    if isvmem and (pds & srcs):
                        req = max(req, 5)
                    if isv and ins.dpp and (pdv & srcv):
                        req = max(req, 2)
                    if isv and (pds & srcs):
                        req = max(req, 2)
                    if isv and base.startswith(('v_readlane', 'v_readfirstlane')) and (pdv & srcv):
                        req = max(req, 1)
                    if isv and base.startswith('v_permlane') and (pdv & srcv):
                        req = max(req, 2)
                    pbase = p.op.replace('_e32', '').replace('_e64', '')
                    if pbase in TRANS and (isv or ismem) and (pdv & srcv):
                        req = max(req, 1)
                    if pbase.startswith('v_dot'):
                        if (isv or ismem) and (pdv & (srcv | dstv)):
                            same = (base == pbase)
                            if same:
                                t = ins.text.split(';')[0].split(None, 1)[1]
                                toks = [o.strip().split()[0] for o in t.split(',')]
                                ab = set(regs_of(toks[1]) + regs_of(toks[2]))
                                if pdv & ab:
                                    req = max(req, 3)
                            else:
                                req = max(req, 3)
                sd = set(p.store_data())
                if sd and (sd & dstv):
                    req = max(req, 2 if isv else 1)
                if req > d:
                    need = max(need, req - d)
                d += p.states()
                if d >= 6:
                    break
            if need > 0:
                emit(Ins('s_nop %d' % (need - 1)))
            emit(ins)
            if ins.kind == 'vmem_load':
                vm.append((set(ins.dst), ins.tag, ins.optional))
            elif ins.kind == 'vmem_store':
                vm.append((set(), ins.tag, ins.optional))
            elif ins.kind == 'ds_load':
                lg.append((set(ins.dst), False))
            elif ins.kind == 'ds_store':
                lg.append((set(), False))
            elif ins.kind == 'smem':
                lg.append((set(ins.dst), True))
            assert len(vm) <= 63, 'too many outstanding vmem ops: %d' % len(vm)
        return '\n'.join(out) + '\n'
```

```python
import sys
from asmlib import Asm

NAME = 'gated_mix__mha_block_cached__dense_activation_gelu__decode'

DEFAULT = dict(
    nt_kv=True,
    kpre=16,
    b4=True,
    stamps=False,
    chk_u=10,
    spin=20000,
)

sXCD, sH, sB, sC, sW, sN = 3, 4, 5, 6, 7, 8
sR, sR1, sLI, sSL, sVAL, sW6 = 9, 10, 11, 12, 13, 14
sT0 = 15
pX, pK, pV, pWQ, pWO, pW1, pB1 = 16, 18, 20, 22, 24, 28, 30
pW2, pB2, pG, pOUT, pDBG, pWS = 32, 34, 36, 38, 40, 42
rK, rV, rWQ, rX, rW1, rW2, rWO, rG, rB1, rB2 = 44, 48, 52, 56, 60, 64, 68, 72, 76, 80
sSELLO, sSELHI = 84, 85
sOFF = 86
sWQO = 93
sT1, sT2 = 94, 95
sM1 = 96
sM0 = 98
sSPIN = 100
sSTAMP = 101

vL = 0
vO16 = 1
vWQ = 2
vAO = 3
vAML = 4
vAY = 5
vPO = 6
vPML = 7
vPY = 8
vLQW = 9
vLOW = 10
vLB = 11
vLOR = 12
vT0, vT1, vT2 = 13, 14, 15
vXQ = 16
vACCF = 16
vACC = 32
vQ = 40
vR = 44
vT = 48
vU = 56
RING = 64
XR = 192
vPP = 240
vW1, vW2, vWO = 192, 200, 208
vXG, vGW, vXW1, vB1, vB2, vCHK = 224, 228, 232, 233, 234, 236
vG, vOMG = 237, 238
vSPARE = 239

QBUF, OBUF, OSTR = 0, 8192, 1040
MX, LW, HB = 16640, 16672, 16704
LDS_BYTES = 17408

OREG = 0
YREG = 0x80000
YB = 32 * 8192
STREG = 0x200000

LOG2E = 1.4426950408889634


def f2h(x):
    import struct
    return '0x%08x' % struct.unpack('<I', struct.pack('<f', x))[0]


def slot(t):
    return RING + 4 * t


def vr(a, n):
    return 'v[%d:%d]' % (a, a + n - 1)


def sr(a, n):
    return 's[%d:%d]' % (a, a + n - 1)


def gen(cfg):
    a = Asm()
    NT = ' nt' if cfg['nt_kv'] else ''
    nstamp = [0]

    def stamp(name):
        if not cfg['stamps']:
            return
        i = nstamp[0]
        nstamp[0] += 1
        a.c('stamp %d %s' % (i, name))
        a('s_memrealtime s[100:101]')
        a('s_waitcnt lgkmcnt(0)')
        a('v_writelane_b32 v31, s100, %d' % i)

    def srd(r, base, off_sgpr, nrec):
        if off_sgpr is None:
            a('s_mov_b32 s%d, s%d' % (r, base))
            a('s_mov_b32 s%d, s%d' % (r + 1, base + 1))
        else:
            a('s_add_u32 s%d, s%d, s%d' % (r, base, off_sgpr))
            a('s_addc_u32 s%d, s%d, 0' % (r + 1, base + 1))
        a('s_mov_b32 s%d, %s' % (r + 2, nrec))
        a('s_mov_b32 s%d, 0x00020000' % (r + 3))

    def kv_load(rs, t):
        so = '0' if t < 4 else 's%d' % (sOFF + t // 4 - 1)
        off = (t % 4) * 1024
        a('buffer_load_dwordx4 %s, v%d, %s, %s offen offset:%d%s' % (vr(slot(t), 4), vO16, sr(rs, 4), so, off, NT))

    def allred(op, reg, tmp):
        for n in (8, 4, 2, 1):
            a('%s_dpp v%d, v%d, v%d row_ror:%d row_mask:0xf bank_mask:0xf' % (op, reg, reg, reg, n))
        a('v_mov_b32 v%d, v%d' % (tmp, reg))
        a('v_permlane16_swap_b32 v%d, v%d' % (reg, tmp))
        a('%s v%d, v%d, v%d' % (op, reg, reg, tmp))
        a('v_mov_b32 v%d, v%d' % (tmp, reg))
        a('v_permlane32_swap_b32 v%d, v%d' % (reg, tmp))
        a('%s v%d, v%d, v%d' % (op, reg, reg, tmp))

    def rnd_bf16(dst, src):
        a('v_cvt_pk_bf16_f32 v%d, v%d, v%d' % (dst, src, src))
        a('v_and_b32 v%d, 0xffff0000, v%d' % (dst, dst))

    a('s_cmp_ge_u32 s2, 256')
    a('s_cbranch_scc1 L_END')
    a('s_load_dwordx16 s[16:31], s[0:1], 0')
    a('s_load_dwordx8 s[32:39], s[0:1], 64')
    a('s_load_dwordx4 s[40:43], s[0:1], 96')
    if cfg['stamps']:
        a('v_mov_b32 v31, 0')
    a('v_lshrrev_b32 v%d, 6, v0' % vT0)
    a('v_and_b32 v%d, 63, v0' % vL)
    a('v_readfirstlane_b32 s%d, v%d' % (sW, vT0))
    a('s_and_b32 s%d, s2, 7' % sXCD)
    a('s_lshr_b32 s%d, s2, 3' % sR)
    a('s_and_b32 s%d, s%d, 1' % (sR1, sR))
    a('s_lshl_b32 s%d, s%d, 3' % (sLI, sR1))
    a('s_add_u32 s%d, s%d, s%d' % (sH, sLI, sXCD))
    a('s_lshr_b32 s%d, s%d, 1' % (sB, sR))
    a('s_and_b32 s%d, s%d, 1' % (sB, sB))
    a('s_lshr_b32 s%d, s%d, 2' % (sC, sR))
    a('s_lshl_b32 s%d, s%d, 4' % (sN, sC))
    a('s_add_u32 s%d, s%d, s%d' % (sN, sN, sH))
    a('s_add_u32 s%d, s%d, s%d' % (sLI, sLI, sC))
    a('s_mul_i32 s%d, s%d, 14' % (sSL, sXCD))
    a('s_add_u32 s%d, s%d, s%d' % (sSL, sSL, sLI))
    a('s_cmp_lt_u32 s%d, 14' % sLI)
    a('s_cselect_b32 s%d, s%d, 0' % (sSL, sSL))
    a('s_cselect_b32 s%d, -1, 0' % sVAL)
    a('s_min_u32 s%d, s%d, 6' % (sW6, sW))
    a('s_mov_b32 s%d, 0x05040100' % sSELLO)
    a('s_mov_b32 s%d, 0x07060302' % sSELHI)
    for j in range(1, 8):
        a('s_mov_b32 s%d, %d' % (sOFF + j - 1, 4096 * j))
    a('v_lshlrev_b32 v%d, 4, v%d' % (vO16, vL))
    a('v_lshrrev_b32 v%d, 5, v%d' % (vT0, vL))
    a('v_and_b32 v%d, 31, v%d' % (vT1, vL))
    a('v_mul_u32_u24 v%d, 0x38000, v%d' % (vWQ, vT0))
    a('v_lshl_add_u32 v%d, v%d, 4, v%d' % (vWQ, vT1, vWQ))
    a('v_lshlrev_b32 v%d, 4, v%d' % (vLB, vT0))
    a('v_lshl_add_u32 v%d, v%d, 5, v%d' % (vLB, vT1, vLB))
    a('v_mul_u32_u24 v%d, 56, v%d' % (vT2, vT0))
    a('s_lshl_b32 s%d, s%d, 4' % (sT0, sB))
    a('s_add_u32 s%d, s%d, s%d' % (sT0, sT0, sH))
    a('s_lshl_b32 s%d, s%d, 21' % (sT1, sT0))
    a('s_lshl_b32 s%d, s%d, 18' % (sT2, sC))
    a('s_add_u32 s%d, s%d, s%d' % (sT1, sT1, sT2))
    a('s_lshl_b32 s%d, s%d, 15' % (sT2, sW))
    a('s_add_u32 s%d, s%d, s%d' % (sT1, sT1, sT2))
    stamp('entry')
    a('s_waitcnt lgkmcnt(0)')
    stamp('kernarg')
    a('s_mul_i32 s%d, s%d, 896' % (sT2, sB))
    srd(rX, pX, sT2, '896')
    srd(rK, pK, sT1, '32768')
    srd(rV, pV, sT1, '32768')
    a('s_mul_i32 s%d, s%d, 112' % (sT2, sW))
    for k in range(3):
        a('buffer_load_dwordx4 %s, v%d, %s, s%d offen offset:%d' % (vr(vXQ + 4 * k, 4), vT2, sr(rX, 4), sT2, 16 * k))
    a('buffer_load_dwordx2 %s, v%d, %s, s%d offen offset:48' % (vr(vXQ + 12, 2), vT2, sr(rX, 4), sT2))
    a('s_mul_i32 s%d, s%d, %d' % (sT1, sW, 56 * 8192))
    a('s_lshl_b32 s%d, s%d, 9' % (sT2, sH))
    a('s_add_u32 s%d, s%d, s%d' % (sT1, sT1, sT2))
    srd(rWQ, pWQ, sT1, '451072')

    def wq_regs(u):
        if u < 8:
            return slot(16 + 2 * u), slot(17 + 2 * u)
        return XR + 8 * (u - 8), XR + 8 * (u - 8) + 4

    kpre = cfg['kpre']
    kq = list(range(kpre))
    for u in range(14):
        if kq:
            kv_load(rK, kq.pop(0))
        A, B = wq_regs(u)
        for j, r in enumerate((A, B)):
            row = 2 * u + j
            if row == 0:
                a('buffer_load_dwordx4 %s, v%d, %s, 0 offen' % (vr(r, 4), vWQ, sr(rWQ, 4)))
            else:
                a('s_mov_b32 s%d, %d' % (sWQO, row * 8192))
                a('buffer_load_dwordx4 %s, v%d, %s, s%d offen' % (vr(r, 4), vWQ, sr(rWQ, 4), sWQO))
    while kq:
        kv_load(rK, kq.pop(0))
    stamp('prologue issued')

    a.c('hand-off addresses')
    a('s_lshl_b32 s%d, s%d, 3' % (sT1, sT0))
    a('s_add_u32 s%d, s%d, s%d' % (sT2, sT1, sW))
    a('s_lshl_b32 s%d, s%d, 11' % (sT2, sT2))
    a('s_lshl_b32 s%d, s%d, 7' % (sWQO, sC))
    a('s_add_u32 s%d, s%d, s%d' % (sWQO, sWQO, sT2))
    a('v_lshrrev_b32 v%d, 3, v%d' % (vT0, vL))
    a('v_and_b32 v%d, 7, v%d' % (vT1, vL))
    a('v_lshl_add_u32 v%d, v%d, 4, s%d' % (vAO, vT0, sWQO))
    a('s_lshl_b32 s%d, s%d, 3' % (sWQO, sC))
    a('s_add_u32 s%d, s%d, s%d' % (sWQO, sWQO, sT2))
    a('s_add_u32 s%d, s%d, 1024' % (sWQO, sWQO))
    a('v_mov_b32 v%d, s%d' % (vAML, sWQO))
    a('s_add_u32 s%d, s%d, s%d' % (sT2, sT1, sC))
    a('s_lshl_b32 s%d, s%d, 11' % (sT2, sT2))
    a('v_lshlrev_b32 v%d, 7, v%d' % (vPO, vT1))
    a('v_lshl_add_u32 v%d, v%d, 4, v%d' % (vPO, vT0, vPO))
    a('v_add_u32 v%d, s%d, v%d' % (vPO, sT2, vPO))
    a('s_add_u32 s%d, s%d, 1024' % (sT2, sT2))
    a('v_lshl_add_u32 v%d, v%d, 3, s%d' % (vPML, vT1, sT2))
    a('s_mul_i32 s%d, s%d, %d' % (sT1, sB, YB))
    a('s_add_u32 s%d, s%d, %d' % (sT1, sT1, YREG))
    a('s_lshl_b32 s%d, s%d, 15' % (sT2, sW))
    a('s_add_u32 s%d, s%d, s%d' % (sT2, sT2, sT1))
    a('s_lshl_b32 s%d, s%d, 6' % (sWQO, sN))
    a('s_add_u32 s%d, s%d, s%d' % (sT2, sT2, sWQO))
    a('v_lshrrev_b32 v%d, 1, v%d' % (vT2, vT1))
    a('v_lshlrev_b32 v%d, 13, v%d' % (vAY, vT2))
    a('v_and_b32 v%d, 1, v%d' % (vT2, vL))
    a('v_lshl_add_u32 v%d, v%d, 5, v%d' % (vAY, vT2, vAY))
    a('v_lshrrev_b32 v%d, 5, v%d' % (vT2, vL))
    a('v_lshl_add_u32 v%d, v%d, 4, v%d' % (vAY, vT2, vAY))
    a('v_bfe_u32 v%d, v%d, 4, 1' % (vT2, vL))
    a('v_lshl_add_u32 v%d, v%d, 3, v%d' % (vAY, vT2, vAY))
    a('v_add_u32 v%d, s%d, v%d' % (vAY, sT2, vAY))
    a('s_min_u32 s%d, s%d, 27' % (sT2, sN))
    a('s_lshl_b32 s%d, s%d, 13' % (sT2, sT2))
    a('s_add_u32 s%d, s%d, s%d' % (sT2, sT2, sT1))
    a('v_and_b32 v%d, 15, v%d' % (vT2, vL))
    a('v_lshlrev_b32 v%d, 6, v%d' % (vPY, vT2))
    a('v_lshrrev_b32 v%d, 4, v%d' % (vT2, vL))
    a('v_lshl_add_u32 v%d, v%d, 4, v%d' % (vPY, vT2, vPY))
    a('v_add_u32 v%d, s%d, v%d' % (vPY, sT2, vPY))
    a('s_lshl_b32 s%d, s%d, 10' % (sT1, sW))
    a('v_add_u32 v%d, s%d, v%d' % (vLQW, sT1, vLB))
    a('s_mul_i32 s%d, s%d, %d' % (sT1, sW, OSTR))
    a('s_add_u32 s%d, s%d, %d' % (sT1, sT1, OBUF))
    a('v_add_u32 v%d, s%d, v%d' % (vLOW, sT1, vLB))
    a('v_mul_u32_u24 v%d, %d, v%d' % (vLOR, OSTR, vT1))
    a('v_lshl_add_u32 v%d, v%d, 4, v%d' % (vLOR, vT0, vLOR))
    a('s_lshl_b32 s%d, s%d, 7' % (sT1, sW))
    a('s_add_u32 s%d, s%d, %d' % (sT1, sT1, OBUF))
    a('v_add_u32 v%d, s%d, v%d' % (vLOR, sT1, vLOR))
    for k in range(4):
        a('v_mov_b32 v%d, -1' % (vR + k))
    a('s_mov_b32 exec_lo, 0x01010101')
    a('s_mov_b32 exec_hi, 0x01010101')
    a('global_store_dwordx4 v%d, %s, %s sc1' % (vAO, vr(vR, 4), sr(pWS, 2)), tag='clr')
    a('s_mov_b32 exec_lo, 0x00ff00ff')
    a('s_mov_b32 exec_hi, 0x00ff00ff')
    a('global_store_dwordx2 v%d, %s, %s sc1' % (vAY, vr(vR, 2), sr(pWS, 2)), tag='clr')
    a('s_mov_b64 exec, 1')
    a('global_store_dwordx2 v%d, %s, %s sc1' % (vAML, vr(vR, 2), sr(pWS, 2)), tag='clr')
    a('s_mov_b64 exec, -1')
    a('s_mov_b32 s%d, 0xcccccccc' % sM1)
    a('s_mov_b32 s%d, 0xcccccccc' % (sM1 + 1))
    a('s_mov_b32 s%d, 0xaaaaaaaa' % sM0)
    a('s_mov_b32 s%d, 0xaaaaaaaa' % (sM0 + 1))

    a.c('q phase')
    knext = kpre
    for u in range(14):
        A, B = wq_regs(u)
        for k in range(4):
            a('v_perm_b32 v%d, v%d, v%d, s%d' % (vT + 2 * k, B + k, A + k, sSELLO))
            a('v_perm_b32 v%d, v%d, v%d, s%d' % (vT + 2 * k + 1, B + k, A + k, sSELHI))
        if u == 0:
            stamp('first wq pair')
        lim = 16 + 2 * u + 2 if u < 8 else 32
        while knext < min(lim, 32) and (knext < 16 or u >= (knext - 16) // 2):
            kv_load(rK, knext)
            knext += 1
        for j in range(8):
            c = '0' if u == 0 else 'v%d' % (vACC + j)
            a('v_dot2_f32_bf16 v%d, v%d, v%d, %s' % (vACC + j, vT + j, vXQ + u, c))
    assert knext == 32
    stamp('q dots done')
    for j in range(4):
        a('v_permlane32_swap_b32 v%d, v%d' % (vACC + j, vACC + j + 4))
    for j in range(4):
        a('v_add_f32 v%d, v%d, v%d' % (vR + j, vACC + j, vACC + j + 4))
    a('ds_write_b128 v%d, %s' % (vLQW, vr(vR, 4)))
    a.wait_tag('clr')
    a('s_waitcnt lgkmcnt(0)')
    a('s_barrier')
    stamp('B1')
    for k in range(8):
        a('ds_read_b128 %s, v%d offset:%d' % (vr(XR + 4 * k, 4), vLB, QBUF + k * 1024))
    for k in range(1, 8):
        for j in range(4):
            a('v_add_f32 v%d, v%d, v%d' % (XR + j, XR + j, XR + 4 * k + j))
    a('v_cvt_pk_bf16_f32 v%d, v%d, v%d' % (vQ, XR, XR + 1))
    a('v_cvt_pk_bf16_f32 v%d, v%d, v%d' % (vQ + 1, XR + 2, XR + 3))
    a('v_mov_b32 v%d, v%d' % (vQ + 2, vQ))
    a('v_mov_b32 v%d, v%d' % (vQ + 3, vQ + 1))
    a('v_permlane32_swap_b32 v%d, v%d' % (vQ, vQ + 2))
    a('v_permlane32_swap_b32 v%d, v%d' % (vQ + 1, vQ + 3))
    stamp('q ready')

    def small_loads():
        a.c('w1 / w2 / wo / gate / bias loads')
        a('s_mul_i32 s%d, s%d, %d' % (sT1, sW6, 64 * 3584))
        a('s_lshl_b32 s%d, s%d, 5' % (sT2, sSL))
        a('s_add_u32 s%d, s%d, s%d' % (sT1, sT1, sT2))
        a('s_and_b32 s%d, s%d, %d' % (sWQO, sVAL, 63 * 3584 + 32))
        srd(rW1, pW1, sT1, 's%d' % sWQO)
        a('s_and_b32 s%d, s%d, 32' % (sWQO, sVAL))
        srd(rB1, pB1, sT2, 's%d' % sWQO)
        a('s_mul_i32 s%d, s%d, %d' % (sT1, sSL, 16 * 896))
        a('s_lshl_b32 s%d, s%d, 7' % (sT2, sW6))
        a('s_add_u32 s%d, s%d, s%d' % (sT1, sT1, sT2))
        a('s_and_b32 s%d, s%d, %d' % (sWQO, sVAL, 15 * 896 + 128))
        srd(rW2, pW2, sT1, 's%d' % sWQO)
        a('s_lshl_b32 s%d, s%d, 8' % (sT1, sH))
        a('s_lshl_b32 s%d, s%d, 5' % (sWQO, sC))
        a('s_add_u32 s%d, s%d, s%d' % (sT1, sT1, sWQO))
        a('s_mul_i32 s%d, s%d, 896' % (sT1, sT1))
        a('s_add_u32 s%d, s%d, s%d' % (sT1, sT1, sT2))
        srd(rWO, pWO, sT1, str(31 * 896 + 128))
        srd(rG, pG, None, '896')
        srd(rB2, pB2, None, '896')
        a('v_and_b32 v%d, 31, v%d' % (vT0, vL))
        a('v_mul_u32_u24 v%d, 7168, v%d' % (vT1, vT0))
        a('v_lshrrev_b32 v%d, 5, v%d' % (vT2, vL))
        a('v_lshl_add_u32 v%d, v%d, 4, v%d' % (vT1, vT2, vT1))
        a('buffer_load_dwordx4 %s, v%d, %s, 0 offen' % (vr(vW1, 4), vT1, sr(rW1, 4)))
        a('buffer_load_dwordx4 %s, v%d, %s, 0 offen offset:3584' % (vr(vW1 + 4, 4), vT1, sr(rW1, 4)))
        a('v_lshlrev_b32 v%d, 2, v%d' % (vT0, vT0))
        a('buffer_load_dword v%d, v%d, %s, s%d offen' % (vXW1, vT0, sr(rX, 4), sT2))
        a('buffer_load_dwordx4 %s, v%d, %s, 0 offen' % (vr(vXG, 4), vO16, sr(rX, 4)))
        a('buffer_load_dwordx4 %s, v%d, %s, 0 offen' % (vr(vGW, 4), vO16, sr(rG, 4)))
        a('v_lshrrev_b32 v%d, 3, v%d' % (vT0, vL))
        a('v_and_b32 v%d, 7, v%d' % (vT1, vL))
        a('v_lshlrev_b32 v%d, 4, v%d' % (vT1, vT1))
        a('v_lshlrev_b32 v%d, 2, v%d' % (vT2, vT0))
        a('buffer_load_dword v%d, v%d, %s, 0 offen' % (vB1, vT2, sr(rB1, 4)))
        a('v_mul_u32_u24 v%d, 1792, v%d' % (vT2, vT0))
        a('v_add_u32 v%d, v%d, v%d' % (vT2, vT2, vT1))
        a('buffer_load_dwordx4 %s, v%d, %s, 0 offen' % (vr(vW2, 4), vT2, sr(rW2, 4)))
        a('buffer_load_dwordx4 %s, v%d, %s, 0 offen offset:896' % (vr(vW2 + 4, 4), vT2, sr(rW2, 4)))
        a('v_mul_u32_u24 v%d, 3584, v%d' % (vT2, vT0))
        a('v_add_u32 v%d, v%d, v%d' % (vT2, vT2, vT1))
        for k in range(4):
            a('buffer_load_dwordx4 %s, v%d, %s, 0 offen offset:%d' % (vr(vWO + 4 * k, 4), vT2, sr(rWO, 4), 896 * k))
        a('s_min_u32 s%d, s%d, 27' % (sT1, sN))
        a('s_lshl_b32 s%d, s%d, 5' % (sT1, sT1))
        a('v_lshrrev_b32 v%d, 4, v%d' % (vT0, vL))
        a('v_lshlrev_b32 v%d, 3, v%d' % (vT0, vT0))
        a('buffer_load_dwordx2 %s, v%d, %s, s%d offen' % (vr(vB2, 2), vT0, sr(rB2, 4), sT1))

    small_loads()

    a.c('K phase')
    pool = [24, 25, 26, 27, 28, 29, 30, 56, 57, 58, 59, 60, 61, 62, 63, 48, 49, 50, 51, 52, 53, 54, 55]
    if not cfg['stamps']:
        pool.append(31)
    levels = {1: [], 2: [], 3: [], 4: [], 5: []}

    def merge(level, x, y):
        if level == 1:
            d = pool.pop(0)
            a('v_add_f32_dpp v%d, v%d, v%d row_ror:8 row_mask:0xf bank_mask:0x3' % (d, x, x))
            a('v_add_f32_dpp v%d, v%d, v%d row_ror:8 row_mask:0xf bank_mask:0xc' % (d, y, y))
            pool.extend([x, y])
            return d
        if level == 2:
            d = pool.pop(0)
            a('v_add_f32_dpp v%d, v%d, v%d row_shl:4 row_mask:0xf bank_mask:0x5' % (d, x, x))
            a('v_add_f32_dpp v%d, v%d, v%d row_shr:4 row_mask:0xf bank_mask:0xa' % (d, y, y))
            pool.extend([x, y])
            return d
        qp = '[2,3,0,1]' if level == 3 else '[1,0,3,2]'
        msk = sM1 if level == 3 else sM0
        a('v_add_f32_dpp v%d, v%d, v%d quad_perm:%s row_mask:0xf bank_mask:0xf' % (x, x, x, qp))
        a('v_add_f32_dpp v%d, v%d, v%d quad_perm:%s row_mask:0xf bank_mask:0xf' % (y, y, y, qp))
        a('v_cndmask_b32_e64 v%d, v%d, v%d, %s' % (x, x, y, sr(msk, 2)))
        pool.append(y)
        return x

    def tree_step(gap, flush=False):
        for level in (4, 3, 2, 1):
            L = levels[level]
            while len(L) >= 2 and (flush or (L[0][1] < gap and L[1][1] < gap)):
                x = L.pop(0)[0]
                y = L.pop(0)[0]
                levels[level + 1].append((merge(level, x, y), gap))
                if not flush:
                    break

    for j in range(16):
        t0, t1 = 2 * j, 2 * j + 1
        x = pool.pop(0)
        y = pool.pop(0)
        for k in range(4):
            a('v_dot2_f32_bf16 v%d, v%d, v%d, %s' % (x, slot(t0) + k, vQ + k, '0' if k == 0 else 'v%d' % x))
            a('v_dot2_f32_bf16 v%d, v%d, v%d, %s' % (y, slot(t1) + k, vQ + k, '0' if k == 0 else 'v%d' % y))
        kv_load(rV, t0)
        kv_load(rV, t1)
        tree_step(j)
        a('v_permlane16_swap_b32 v%d, v%d' % (x, y))
        a('v_add_f32 v%d, v%d, v%d' % (x, x, y))
        pool.append(y)
        levels[1].append((x, j))
        if j in (0, 7):
            stamp('K pair %d' % j)
    for g in range(16, 24):
        tree_step(g)
    assert len(levels[5]) == 1 and not any(levels[l] for l in (1, 2, 3, 4)), levels
    vS = levels[5][0][0]
    stamp('K done')
    vM = 54
    vE, vTM = 28, 29

    rnd_bf16(30, vS)
    vS = 30
    a('v_mov_b32 v%d, v%d' % (vE, vS))
    allred('v_max_f32', vE, vTM)
    a('s_lshl_b32 s%d, s%d, 2' % (sT1, sW))
    a('s_add_u32 s%d, s%d, %d' % (sT1, sT1, MX))
    a('v_mov_b32 v%d, s%d' % (vT0, sT1))
    a('ds_write_b32 v%d, v%d' % (vT0, vE))

    a.c('h partial')
    for k in range(4):
        a('v_perm_b32 v%d, v%d, v%d, s%d' % (vU + 2 * k, vW1 + 4 + k, vW1 + k, sSELLO))
        a('v_perm_b32 v%d, v%d, v%d, s%d' % (vU + 2 * k + 1, vW1 + 4 + k, vW1 + k, sSELHI))
    for j in range(8):
        a('v_dot2_f32_bf16 v%d, v%d, v%d, 0' % (vW1 + j, vU + j, vXW1))
    for j in range(4):
        a('v_permlane16_swap_b32 v%d, v%d' % (vW1 + j, vW1 + j + 4))
    for j in range(4):
        a('v_add_f32 v%d, v%d, v%d' % (vW1 + j, vW1 + j, vW1 + j + 4))
    for j in range(2):
        a('v_add_f32_dpp v%d, v%d, v%d row_ror:8 row_mask:0xf bank_mask:0x3' % (vW1 + 4 + j, vW1 + j, vW1 + j))
        a('v_add_f32_dpp v%d, v%d, v%d row_ror:8 row_mask:0xf bank_mask:0xc' % (vW1 + 4 + j, vW1 + 2 + j, vW1 + 2 + j))
    a('v_add_f32_dpp v%d, v%d, v%d row_shl:4 row_mask:0xf bank_mask:0x5' % (vW1, vW1 + 4, vW1 + 4))
    a('v_add_f32_dpp v%d, v%d, v%d row_shr:4 row_mask:0xf bank_mask:0xa' % (vW1, vW1 + 5, vW1 + 5))
    a('v_add_f32_dpp v%d, v%d, v%d quad_perm:[2,3,0,1] row_mask:0xf bank_mask:0xf' % (vW1, vW1, vW1))
    a('v_add_f32_dpp v%d, v%d, v%d quad_perm:[1,0,3,2] row_mask:0xf bank_mask:0xf' % (vW1, vW1, vW1))
    a('s_lshl_b32 s%d, s%d, 6' % (sT1, sW))
    a('s_add_u32 s%d, s%d, %d' % (sT1, sT1, HB))
    a('v_and_b32 v%d, 0x3c, v%d' % (vT1, vL))
    a('v_add_u32 v%d, s%d, v%d' % (vT1, sT1, vT1))
    a('ds_write_b32 v%d, v%d' % (vT1, vW1))
    a('s_waitcnt lgkmcnt(0)')
    a('s_barrier')
    stamp('B2')
    a('s_cmp_lg_u32 s%d, 0' % sW)
    a('s_cbranch_scc1 L_NOFLAG')
    a('s_lshl_b32 s%d, s%d, 4' % (sT1, sB))
    a('s_add_u32 s%d, s%d, s%d' % (sT1, sT1, sH))
    a('s_lshl_b32 s%d, s%d, 2' % (sT1, sT1))
    a('v_mov_b32 v%d, s%d' % (vT0, sT1))
    a('v_mov_b32 v%d, 1' % vT1)
    a('s_mov_b64 exec, 1')
    a('global_atomic_add v%d, v%d, %s' % (vT0, vT1, sr(pDBG, 2)), optional=True)
    a('s_mov_b64 exec, -1')
    a.label('L_NOFLAG')
    a('s_nop 1')

    a('v_mov_b32 v%d, %d' % (vT0, MX))
    a('ds_read_b128 %s, v%d' % (vr(vU, 4), vT0))
    a('ds_read_b128 %s, v%d offset:16' % (vr(vU + 4, 4), vT0))
    a('v_max3_f32 v%d, v%d, v%d, v%d' % (vM, vU, vU + 1, vU + 2))
    a('v_max3_f32 v%d, v%d, v%d, v%d' % (vM, vM, vU + 3, vU + 4))
    a('v_max3_f32 v%d, v%d, v%d, v%d' % (vM, vM, vU + 5, vU + 6))
    a('v_max_f32 v%d, v%d, v%d' % (vM, vM, vU + 7))
    CS = f2h(LOG2E / 16.0)
    a('v_sub_f32 v%d, v%d, v%d' % (vE, vS, vM))
    a('v_mul_f32 v%d, %s, v%d' % (vE, CS, vE))
    a('v_exp_f32 v%d, v%d' % (vE, vE))
    a('v_mov_b32 v%d, v%d' % (vS, vE))
    a('v_mov_b32 v%d, v%d' % (vTM, vE))
    a('v_permlane16_swap_b32 v%d, v%d' % (vS, vTM))
    a('v_cvt_pk_bf16_f32 v%d, v%d, v%d' % (vS, vS, vTM))

    def rev4(x):
        return ((x & 1) << 3) | ((x & 2) << 1) | ((x & 4) >> 1) | ((x & 8) >> 3)
    for u in range(16):
        a('ds_swizzle_b32 v%d, v%d offset:%d' % (vPP + u, vS, rev4(u) << 5))
    allred('v_add_f32', vE, vTM)
    a('s_lshl_b32 s%d, s%d, 2' % (sT1, sW))
    a('s_add_u32 s%d, s%d, %d' % (sT1, sT1, LW))
    a('v_mov_b32 v%d, s%d' % (vT0, sT1))
    a('ds_write_b32 v%d, v%d' % (vT0, vE))
    stamp('softmax done')

    a.c('gate')
    ta, tb, tc, td = vU, vU + 1, vU + 2, vU + 3
    vZ = vU + 4
    a('s_mov_b32 s%d, 0x3f803f80' % sT2)
    for k in range(4):
        a('v_lshlrev_b32 v%d, 16, v%d' % (ta, vXG + k))
        a('v_lshlrev_b32 v%d, 16, v%d' % (tb, vGW + k))
        a('v_and_b32 v%d, 0xffff0000, v%d' % (tc, vXG + k))
        a('v_and_b32 v%d, 0xffff0000, v%d' % (td, vGW + k))
        a('v_mul_f32 v%d, v%d, v%d' % (ta, ta, tb))
        a('v_mul_f32 v%d, v%d, v%d' % (tc, tc, td))
        a('v_cvt_pk_bf16_f32 v%d, v%d, v%d' % (ta, ta, tc))
        a('v_dot2_f32_bf16 v%d, v%d, s%d, %s' % (vZ, ta, sT2, '0' if k == 0 else 'v%d' % vZ))
    allred('v_add_f32', vZ, ta)
    rnd_bf16(vZ, vZ)
    a('v_mul_f32 v%d, %s, v%d' % (vZ, f2h(-LOG2E), vZ))
    a('v_exp_f32 v%d, v%d' % (vZ, vZ))
    a('v_add_f32 v%d, 1.0, v%d' % (vZ, vZ))
    a('v_rcp_f32 v%d, v%d' % (vZ, vZ))
    rnd_bf16(vG, vZ)
    a('v_sub_f32 v%d, 1.0, v%d' % (vOMG, vG))
    rnd_bf16(vOMG, vOMG)

    a.c('ffn second layer partial')
    a('v_lshrrev_b32 v%d, 3, v%d' % (vT0, vL))
    a('v_lshlrev_b32 v%d, 3, v%d' % (vT0, vT0))
    hb = vW1
    regs = [vXG, vXG + 2, vXG + 4, vXG + 6, vW1, vW1 + 2, vW1 + 4]
    for k in range(7):
        a('ds_read_b64 %s, v%d offset:%d' % (vr(regs[k], 2), vT0, HB + 64 * k))
    for k in range(1, 7):
        for j in range(2):
            a('v_add_f32 v%d, v%d, v%d' % (regs[0] + j, regs[0] + j, regs[k] + j))
    h0, h1 = regs[0], regs[0] + 1
    t0_, t1_ = vU, vU + 1
    a('v_cvt_pk_bf16_f32 v%d, v%d, v%d' % (t0_, h0, h1))
    a('v_lshlrev_b32 v%d, 16, v%d' % (h0, t0_))
    a('v_and_b32 v%d, 0xffff0000, v%d' % (h1, t0_))
    a('v_lshlrev_b32 v%d, 16, v%d' % (t0_, vB1))
    a('v_and_b32 v%d, 0xffff0000, v%d' % (t1_, vB1))
    a('v_add_f32 v%d, v%d, v%d' % (h0, h0, t0_))
    a('v_add_f32 v%d, v%d, v%d' % (h1, h1, t1_))
    a('v_cvt_pk_bf16_f32 v%d, v%d, v%d' % (t0_, h0, h1))
    a('v_lshlrev_b32 v%d, 16, v%d' % (h0, t0_))
    a('v_and_b32 v%d, 0xffff0000, v%d' % (h1, t0_))
    C1 = -2.0 * LOG2E * 0.7978845608028654
    C2 = C1 * 0.044715
    a('s_mov_b32 s%d, %s' % (sT1, f2h(C2)))
    a('s_mov_b32 s%d, %s' % (sT2, f2h(C1)))
    for hh, tt in ((h0, t0_), (h1, t1_)):
        a('v_mul_f32 v%d, v%d, v%d' % (tt, hh, hh))
    for hh, tt in ((h0, t0_), (h1, t1_)):
        a('v_mul_f32 v%d, s%d, v%d' % (tt, sT1, tt))
    for hh, tt in ((h0, t0_), (h1, t1_)):
        a('v_add_f32 v%d, s%d, v%d' % (tt, sT2, tt))
    for hh, tt in ((h0, t0_), (h1, t1_)):
        a('v_mul_f32 v%d, v%d, v%d' % (tt, tt, hh))
    for hh, tt in ((h0, t0_), (h1, t1_)):
        a('v_exp_f32 v%d, v%d' % (tt, tt))
    for hh, tt in ((h0, t0_), (h1, t1_)):
        a('v_add_f32 v%d, 1.0, v%d' % (tt, tt))
    for hh, tt in ((h0, t0_), (h1, t1_)):
        a('v_rcp_f32 v%d, v%d' % (tt, tt))
    for hh, tt in ((h0, t0_), (h1, t1_)):
        a('v_mul_f32 v%d, v%d, v%d' % (hh, hh, tt))
    vHP = vXW1
    a('v_cvt_pk_bf16_f32 v%d, v%d, v%d' % (vHP, h0, h1))
    for k in range(4):
        a('v_perm_b32 v%d, v%d, v%d, s%d' % (vU + 2 * k, vW2 + 4 + k, vW2 + k, sSELLO))
        a('v_perm_b32 v%d, v%d, v%d, s%d' % (vU + 2 * k + 1, vW2 + 4 + k, vW2 + k, sSELHI))
    for j in range(8):
        a('v_dot2_f32_bf16 v%d, v%d, v%d, 0' % (vACCF + j, vU + j, vHP))
    a('s_nop 1')
    for j in range(8):
        a('v_mul_f32 v%d, v%d, v%d' % (vACCF + j, vACCF + j, vOMG))
    vB2F = 24
    a('v_lshlrev_b32 v%d, 16, v%d' % (vB2F, vB2))
    a('v_and_b32 v%d, 0xffff0000, v%d' % (vB2F + 1, vB2))
    a('v_lshlrev_b32 v%d, 16, v%d' % (vB2F + 2, vB2 + 1))
    a('v_and_b32 v%d, 0xffff0000, v%d' % (vB2F + 3, vB2 + 1))
    for j in range(4):
        a('v_mul_f32 v%d, v%d, v%d' % (vB2F + j, vB2F + j, vOMG))
    a.c('wo pre-permute')
    WP = [[None] * 8, [None] * 8]
    spare = vW2
    for p in range(2):
        A, B = vWO + 8 * p, vWO + 8 * p + 4
        for k in range(4):
            a('v_perm_b32 v%d, v%d, v%d, s%d' % (spare, B + k, A + k, sSELLO))
            a('v_perm_b32 v%d, v%d, v%d, s%d' % (B + k, B + k, A + k, sSELHI))
            WP[p][2 * k] = spare
            WP[p][2 * k + 1] = B + k
            spare = A + k
    stamp('mid done')

    a.c('V phase')
    for u in range(16):
        A, B = slot(2 * u), slot(2 * u + 1)
        for k in range(4):
            a('v_perm_b32 v%d, v%d, v%d, s%d' % (vU + 2 * k, B + k, A + k, sSELLO))
            a('v_perm_b32 v%d, v%d, v%d, s%d' % (vU + 2 * k + 1, B + k, A + k, sSELHI))
        for j in range(8):
            c = '0' if u == 0 else 'v%d' % (vACC + j)
            a('v_dot2_f32_bf16 v%d, v%d, v%d, %s' % (vACC + j, vU + j, vPP + u, c))
        if u == cfg['chk_u']:
            a('v_and_b32 v%d, 15, v%d' % (vT0, vL))
            a('s_lshl_b32 s%d, s%d, 4' % (sT1, sB))
            a('v_add_u32 v%d, s%d, v%d' % (vT0, sT1, vT0))
            a('v_lshlrev_b32 v%d, 2, v%d' % (vSPARE, vT0))
            a('global_load_dword v%d, v%d, %s sc1' % (vCHK, vSPARE, sr(pDBG, 2)))
        if u in (0, 7):
            stamp('V pair %d' % u)
    stamp('V done')
    for j in range(4):
        a('v_permlane32_swap_b32 v%d, v%d' % (vACC + j, vACC + j + 4))
    for j in range(4):
        a('v_add_f32 v%d, v%d, v%d' % (vR + j, vACC + j, vACC + j + 4))
    a('ds_write_b128 v%d, %s' % (vLOW, vr(vR, 4)))
    a('v_and_b32 v%d, 7, v%d' % (vT0, vL))
    a('v_lshlrev_b32 v%d, 2, v%d' % (vT0, vT0))
    a('s_waitcnt lgkmcnt(0)')
    a('s_barrier')
    stamp('B3')
    vO = 48
    a('ds_read_b128 %s, v%d' % (vr(vO, 4), vLOR))
    a('ds_read_b32 v%d, v%d offset:%d' % (vM + 1, vT0, LW))
    five = [vO, vO + 1, vO + 2, vO + 3, vM + 1]
    for ctl in ('quad_perm:[1,0,3,2]', 'quad_perm:[2,3,0,1]', 'row_half_mirror'):
        for r in five:
            a('v_add_f32_dpp v%d, v%d, v%d %s row_mask:0xf bank_mask:0xf' % (r, r, r, ctl))
    a('s_mov_b32 exec_lo, 0x01010101')
    a('s_mov_b32 exec_hi, 0x01010101')
    a('global_store_dwordx4 v%d, %s, %s sc1' % (vAO, vr(vO, 4), sr(pWS, 2)))
    a('s_mov_b64 exec, 1')
    a('global_store_dwordx2 v%d, %s, %s sc1' % (vAML, vr(vM, 2), sr(pWS, 2)))
    a('s_mov_b64 exec, -1')
    stamp('o published')
    a('v_cmp_ne_u32 vcc, 8, v%d' % vCHK)
    a.save('chk')
    a('s_cbranch_vccnz L_CHK_SLOW')
    a.label('L_CHK_OK')
    a('s_cmp_eq_u32 s%d, 7' % sW)
    a.save('w7')
    a('s_cbranch_scc1 L_RED')

    a.c('hop 1')
    a('s_mov_b32 s%d, %d' % (sSPIN, cfg['spin']))
    vPo, vPm = 64, 68
    a.label('L_POLL1')
    a('global_load_dwordx4 %s, v%d, %s sc1' % (vr(vPo, 4), vPO, sr(pWS, 2)))
    a('global_load_dwordx2 %s, v%d, %s sc1' % (vr(vPm, 2), vPML, sr(pWS, 2)))
    a('s_sub_u32 s%d, s%d, 1' % (sSPIN, sSPIN))
    a('s_cmp_eq_u32 s%d, 0' % sSPIN)
    a('s_waitcnt vmcnt(0)')
    a('s_cbranch_scc1 L_POLL1_DONE')
    a('v_max3_u32 v70, v64, v65, v66')
    a('v_max3_u32 v71, v67, v68, v69')
    a('v_max_u32 v70, v70, v71')
    a('v_cmp_eq_u32 vcc, -1, v70')
    a('s_cbranch_vccnz L_POLL1')
    a.label('L_POLL1_DONE')
    a('s_nop 0')
    stamp('hop1 data')
    m, l, Mx, w_, L_ = 68, 69, 70, 71, 72
    a('v_max_f32_dpp v%d, v%d, v%d quad_perm:[1,0,3,2] row_mask:0xf bank_mask:0xf' % (Mx, m, m))
    a('v_max_f32_dpp v%d, v%d, v%d quad_perm:[2,3,0,1] row_mask:0xf bank_mask:0xf' % (Mx, Mx, Mx))
    a('v_max_f32_dpp v%d, v%d, v%d row_half_mirror row_mask:0xf bank_mask:0xf' % (Mx, Mx, Mx))
    a('v_sub_f32 v%d, v%d, v%d' % (w_, m, Mx))
    a('v_mul_f32 v%d, %s, v%d' % (w_, CS, w_))
    a('v_exp_f32 v%d, v%d' % (w_, w_))
    a('v_mul_f32 v%d, v%d, v%d' % (L_, l, w_))
    for j in range(4):
        a('v_mul_f32 v%d, v%d, v%d' % (vPo + j, vPo + j, w_))
    five = [L_, vPo, vPo + 1, vPo + 2, vPo + 3]
    for ctl in ('quad_perm:[1,0,3,2]', 'quad_perm:[2,3,0,1]', 'row_half_mirror'):
        for r in five:
            a('v_add_f32_dpp v%d, v%d, v%d %s row_mask:0xf bank_mask:0xf' % (r, r, r, ctl))
    a('v_rcp_f32 v%d, v%d' % (L_, L_))
    a('v_mul_f32 v%d, v%d, v%d' % (L_, L_, vG))
    for j in range(4):
        a('v_mul_f32 v%d, v%d, v%d' % (vPo + j, vPo + j, L_))
    a('v_cvt_pk_bf16_f32 v74, v%d, v%d' % (vPo, vPo + 1))
    a('v_cvt_pk_bf16_f32 v75, v%d, v%d' % (vPo + 2, vPo + 3))
    for j in range(8):
        a('v_dot2_f32_bf16 v%d, v%d, v74, v%d' % (vACCF + j, WP[0][j], vACCF + j))
    for j in range(8):
        a('v_dot2_f32_bf16 v%d, v%d, v75, v%d' % (vACCF + j, WP[1][j], vACCF + j))
    y = vACCF
    for j in range(4):
        a('v_permlane32_swap_b32 v%d, v%d' % (y + j, y + j + 4))
    for j in range(4):
        a('v_add_f32 v%d, v%d, v%d' % (y + j, y + j, y + j + 4))
    a('v_permlane16_swap_b32 v%d, v%d' % (y, y + 2))
    a('v_permlane16_swap_b32 v%d, v%d' % (y + 1, y + 3))
    a('v_add_f32 v%d, v%d, v%d' % (y, y, y + 2))
    a('v_add_f32 v%d, v%d, v%d' % (y + 1, y + 1, y + 3))
    a('v_add_f32_dpp v%d, v%d, v%d row_ror:8 row_mask:0xf bank_mask:0xf' % (y, y, y))
    a('v_add_f32_dpp v%d, v%d, v%d row_ror:8 row_mask:0xf bank_mask:0xf' % (y + 1, y + 1, y + 1))
    a('s_mov_b32 exec_lo, 0x00ff00ff')
    a('s_mov_b32 exec_hi, 0x00ff00ff')
    a('global_store_dwordx2 v%d, %s, %s sc1' % (vAY, vr(y, 2), sr(pWS, 2)))
    a('s_mov_b64 exec, -1')
    stamp('y published')
    if cfg['b4']:
        a('s_cmp_ge_u32 s%d, 28' % sN)
        a('s_cbranch_scc1 L_FIN')
        a('s_barrier')
    a('s_branch L_FIN')

    a.label('L_RED')
    a.restore('w7')
    a('s_cmp_ge_u32 s%d, 28' % sN)
    a('s_cbranch_scc1 L_FIN')
    if cfg['b4']:
        a('s_barrier')
    a('s_mov_b32 s%d, %d' % (sSPIN, cfg['spin']))
    a('v_add_u32 v%d, 4096, v%d' % (vT0, vPY))
    a.label('L_POLL2')
    for k in range(8):
        a('global_load_dwordx4 %s, v%d, %s offset:%d sc1' % (vr(64 + 4 * k, 4), vPY if k < 4 else vT0, sr(pWS, 2), (k % 4) * 1024))
    a('s_sub_u32 s%d, s%d, 1' % (sSPIN, sSPIN))
    a('s_cmp_eq_u32 s%d, 0' % sSPIN)
    a('s_waitcnt vmcnt(0)')
    a('s_cbranch_scc1 L_POLL2_DONE')
    a('v_max3_u32 v100, v64, v65, v66')
    a('v_max3_u32 v101, v67, v68, v69')
    for k in range(70, 94, 4):
        a('v_max3_u32 v100, v100, v%d, v%d' % (k, k + 1))
        a('v_max3_u32 v101, v101, v%d, v%d' % (k + 2, k + 3))
    a('v_max3_u32 v100, v100, v94, v95')
    a('v_max_u32 v100, v100, v101')
    a('v_cmp_eq_u32 vcc, -1, v100')
    a('s_cbranch_vccnz L_POLL2')
    a.label('L_POLL2_DONE')
    a('s_nop 0')
    stamp('hop2 data')
    for step in (16, 8, 4):
        for base in range(64, 64 + step, 4):
            for j in range(4):
                a('v_add_f32 v%d, v%d, v%d' % (base + j, base + j, base + step + j))
    for n in (8, 4, 2, 1):
        for j in range(4):
            a('v_add_f32_dpp v%d, v%d, v%d row_ror:%d row_mask:0xf bank_mask:0xf' % (64 + j, 64 + j, 64 + j, n))
    for j in range(4):
        a('v_add_f32 v%d, v%d, v%d' % (64 + j, 64 + j, vB2F + j))
    a('v_cvt_pk_bf16_f32 v64, v64, v65')
    a('v_cvt_pk_bf16_f32 v65, v66, v67')
    a('s_mul_i32 s%d, s%d, 896' % (sT1, sB))
    a('s_lshl_b32 s%d, s%d, 5' % (sT2, sN))
    a('s_add_u32 s%d, s%d, s%d' % (sT1, sT1, sT2))
    a('v_lshrrev_b32 v%d, 4, v%d' % (vT0, vL))
    a('v_lshl_add_u32 v%d, v%d, 3, s%d' % (vT0, vT0, sT1))
    a('s_mov_b32 exec_lo, 0x00010001')
    a('s_mov_b32 exec_hi, 0x00010001')
    a('global_store_dwordx2 v%d, v[64:65], %s' % (vT0, sr(pOUT, 2)))
    a('s_mov_b64 exec, -1')
    stamp('out stored')

    a.label('L_FIN')
    if cfg['stamps']:
        a('s_nop 4')
        a('s_memrealtime s[100:101]')
        a('s_waitcnt lgkmcnt(0)')
        a('v_writelane_b32 v31, s100, 63')
        a('s_lshl_b32 s94, s2, 3')
        a('s_add_u32 s94, s94, s%d' % sW)
        a('s_lshl_b32 s94, s94, 8')
        a('s_add_u32 s94, s94, %d' % STREG)
        a('v_lshl_add_u32 v30, v%d, 2, s94' % vL)
        a('global_store_dword v30, v31, %s' % sr(pWS, 2))
    a('s_endpgm')

    a.label('L_CHK_SLOW')
    a.restore('chk')
    a('s_mov_b32 s%d, %d' % (sSPIN, cfg['spin']))
    a.label('L_CHK_LOOP')
    a('global_load_dword v%d, v%d, %s sc1' % (vCHK, vSPARE, sr(pDBG, 2)))
    a('s_sub_u32 s%d, s%d, 1' % (sSPIN, sSPIN))
    a('s_cmp_eq_u32 s%d, 0' % sSPIN)
    a('s_waitcnt vmcnt(0)')
    a('s_cbranch_scc1 L_CHK_OK')
    a('v_cmp_ne_u32 vcc, 8, v%d' % vCHK)
    a('s_cbranch_vccnz L_CHK_LOOP')
    a('s_branch L_CHK_OK')
    a.label('L_END')
    body = a.finalize()
    return body


HEADER = open('cdna_kernels/%s.s.ref' % NAME).read().split('; Override launch geometry')[0]


def wrap(body, cfg):
    s = HEADER
    s += '; Override launch geometry by editing the next line (default: block=256,\n'
    s += '; grid=ceil(out_elems/256), lds=0). Harness parses it; keep it on one line.\n'
    s += '; @launch grid=(256,1,1) block=(512,1,1) lds=%d\n' % LDS_BYTES
    s += '.amdgcn_target "amdgcn-amd-amdhsa--gfx950"\n.text\n.globl %s_kernel\n.p2align 8\n' % NAME
    s += '.type %s_kernel,@function\n%s_kernel:\n' % (NAME, NAME)
    s += body
    s += 's_endpgm\n'
    s += '.section .rodata,"a"\n.p2align 6\n.amdhsa_kernel %s_kernel\n' % NAME
    s += '  .amdhsa_next_free_vgpr 256\n  .amdhsa_next_free_sgpr 102\n  .amdhsa_accum_offset 256\n'
    s += '  .amdhsa_group_segment_fixed_size 0\n  .amdhsa_kernarg_size 112\n  .amdhsa_user_sgpr_count 2\n'
    s += '  .amdhsa_user_sgpr_kernarg_segment_ptr 1\n  .amdhsa_system_sgpr_workgroup_id_x 1\n.end_amdhsa_kernel\n'
    return s


def build(out, **kw):
    cfg = dict(DEFAULT)
    cfg.update(kw)
    s = wrap(gen(cfg), cfg)
    open(out, 'w').write(s)
    return s


if __name__ == '__main__':
    out = sys.argv[1] if len(sys.argv) > 1 else 'cdna_kernels/%s.s' % NAME
    kw = {}
    for arg in sys.argv[2:]:
        k, v = arg.split('=')
        kw[k] = eval(v)
    build(out, **kw)
    print('wrote', out)
```

```python
import sys
from asmlib import Asm

NAME = 'gated_mix__mha_block_cached__dense_activation_gelu__decode'

DEFAULT = dict(
    nt_kv=True,
    nt_w='q12ox',
    gran=4,
    kpre=16,
    nve=4,
    nvk=8,
    nvb=10,
    win=12,
    skip7=True,
    stop=None,
    stamps=False,
    chk_u=4,
    spin=20000,
)

sXCD, sH, sB, sC, sW, sN = 3, 4, 5, 6, 7, 8
sR, sR1, sLI, sSL, sVAL, sW6 = 9, 10, 11, 12, 13, 14
sT0 = 15
pX, pK, pV, pWQ, pWO, pW1, pB1 = 16, 18, 20, 22, 24, 28, 30
pW2, pB2, pG, pOUT, pDBG, pWS = 32, 34, 36, 38, 40, 42
rK, rV, rWQ, rX, rW1, rW2, rWO, rG, rB1, rB2 = 44, 48, 52, 56, 60, 64, 68, 72, 76, 80
sSELLO, sSELHI = 84, 85
sOFF = 86
sWQO = 93
sT1, sT2 = 94, 95
sKVO = 26
sM1 = 96
sM0 = 98
sSPIN = 100
sSTAMP = 101

vL = 0
vO16 = 1
vWQ = 2
vAO = 3
vAML = 4
vAY = 5
vPO = 6
vPML = 7
vPY = 8
vLQW = 9
vLOW = 10
vLB = 11
vLOR = 12
vT0, vT1, vT2 = 13, 14, 15
vXQ = 16
vACCF = 16
vACC = 32
vQ = 40
vR = 44
vT = 48
vU = 56
RING = 64
XR = 192
vPP = 176
VE = 240
vW1, vW2, vWO = 192, 200, 208
vXG, vGW, vXW1, vB1, vB2, vCHK = 224, 228, 232, 233, 234, 236
vG, vOMG = 237, 238
vSPARE = 239

QBUF, OBUF, OSTR = 0, 8192, 1040
MX, LW, HB, OCB = 16640, 16672, 16704, 17216
LDS_BYTES = 17408

OREG = 0
YREG = 0x80000
YB = 32 * 8192
STREG = 0x200000

LOG2E = 1.4426950408889634


def f2h(x):
    import struct
    return '0x%08x' % struct.unpack('<I', struct.pack('<f', x))[0]


def slot(t):
    return RING + 4 * t


def vslot(t):
    return VE + 4 * t if t < 4 else RING + 4 * (t - 4)


def vr(a, n):
    return 'v[%d:%d]' % (a, a + n - 1)


def sr(a, n):
    return 's[%d:%d]' % (a, a + n - 1)


def gen(cfg):
    a = Asm()
    NT = ' nt' if cfg['nt_kv'] else ''
    NWQ, NW1, NW2, NWO, NW = [' nt' if ch in cfg['nt_w'] else '' for ch in 'q12ox']
    gran = cfg['gran']

    def kvoff(t):
        return (t // gran) * gran * 8192 + (t % gran) * 1024
    nstamp = [0]

    def stamp(name):
        if not cfg['stamps']:
            return
        i = nstamp[0]
        nstamp[0] += 1
        a.c('stamp %d %s' % (i, name))
        a('s_memrealtime s[100:101]')
        a('s_waitcnt lgkmcnt(0)')
        a('v_writelane_b32 v31, s100, %d' % i)

    def srd(r, base, off_sgpr, nrec):
        if off_sgpr is None:
            a('s_mov_b32 s%d, s%d' % (r, base))
            a('s_mov_b32 s%d, s%d' % (r + 1, base + 1))
        else:
            a('s_add_u32 s%d, s%d, s%d' % (r, base, off_sgpr))
            a('s_addc_u32 s%d, s%d, 0' % (r + 1, base + 1))
        a('s_mov_b32 s%d, %s' % (r + 2, nrec))
        a('s_mov_b32 s%d, 0x00020000' % (r + 3))

    def kv_load(rs, t):
        reg = slot(t) if rs == rK else vslot(t)
        if gran >= 4:
            so = '0' if t < 4 else 's%d' % (sOFF + t // 4 - 1)
            off = (t % 4) * 1024
        else:
            off = 0
            so = '0'
            if t > 0:
                a('s_mov_b32 s%d, %d' % (sKVO, kvoff(t)))
                so = 's%d' % sKVO
        a('buffer_load_dwordx4 %s, v%d, %s, %s offen offset:%d%s' % (vr(reg, 4), vO16, sr(rs, 4), so, off, NT))

    vissued = [0]

    def v_upto(n):
        n = min(n, 32)
        while vissued[0] < n:
            kv_load(rV, vissued[0])
            vissued[0] += 1

    def allred(op, reg, tmp):
        for n in (8, 4, 2, 1):
            a('%s_dpp v%d, v%d, v%d row_ror:%d row_mask:0xf bank_mask:0xf' % (op, reg, reg, reg, n))
        a('v_mov_b32 v%d, v%d' % (tmp, reg))
        a('v_permlane16_swap_b32 v%d, v%d' % (reg, tmp))
        a('%s v%d, v%d, v%d' % (op, reg, reg, tmp))
        a('v_mov_b32 v%d, v%d' % (tmp, reg))
        a('v_permlane32_swap_b32 v%d, v%d' % (reg, tmp))
        a('%s v%d, v%d, v%d' % (op, reg, reg, tmp))

    def rnd_bf16(dst, src):
        a('v_cvt_pk_bf16_f32 v%d, v%d, v%d' % (dst, src, src))
        a('v_and_b32 v%d, 0xffff0000, v%d' % (dst, dst))

    a('s_cmp_ge_u32 s2, 256')
    a('s_cbranch_scc1 L_END')
    a('s_load_dwordx16 s[16:31], s[0:1], 0')
    a('s_load_dwordx8 s[32:39], s[0:1], 64')
    a('s_load_dwordx4 s[40:43], s[0:1], 96')
    if cfg['stamps']:
        a('v_mov_b32 v31, 0')
    a('v_lshrrev_b32 v%d, 6, v0' % vT0)
    a('v_and_b32 v%d, 63, v0' % vL)
    a('v_readfirstlane_b32 s%d, v%d' % (sW, vT0))
    a('s_and_b32 s%d, s2, 7' % sXCD)
    a('s_lshr_b32 s%d, s2, 3' % sR)
    a('s_and_b32 s%d, s%d, 1' % (sR1, sR))
    a('s_lshl_b32 s%d, s%d, 3' % (sLI, sR1))
    a('s_add_u32 s%d, s%d, s%d' % (sH, sLI, sXCD))
    a('s_lshr_b32 s%d, s%d, 1' % (sB, sR))
    a('s_and_b32 s%d, s%d, 1' % (sB, sB))
    a('s_lshr_b32 s%d, s%d, 2' % (sC, sR))
    a('s_lshl_b32 s%d, s%d, 4' % (sN, sC))
    a('s_add_u32 s%d, s%d, s%d' % (sN, sN, sH))
    a('s_add_u32 s%d, s%d, s%d' % (sLI, sLI, sC))
    a('s_mul_i32 s%d, s%d, 14' % (sSL, sXCD))
    a('s_add_u32 s%d, s%d, s%d' % (sSL, sSL, sLI))
    a('s_cmp_lt_u32 s%d, 14' % sLI)
    a('s_cselect_b32 s%d, s%d, 0' % (sSL, sSL))
    a('s_cselect_b32 s%d, -1, 0' % sVAL)
    a('s_min_u32 s%d, s%d, 6' % (sW6, sW))
    a('s_mov_b32 s%d, 0x05040100' % sSELLO)
    a('s_mov_b32 s%d, 0x07060302' % sSELHI)
    if gran >= 4:
        for j in range(1, 8):
            a('s_mov_b32 s%d, %d' % (sOFF + j - 1, kvoff(4 * j)))
    a('v_lshlrev_b32 v%d, 4, v%d' % (vO16, vL))
    a('v_lshrrev_b32 v%d, 5, v%d' % (vT0, vL))
    a('v_and_b32 v%d, 31, v%d' % (vT1, vL))
    a('v_mul_u32_u24 v%d, 0x38000, v%d' % (vWQ, vT0))
    a('v_lshl_add_u32 v%d, v%d, 4, v%d' % (vWQ, vT1, vWQ))
    a('v_lshlrev_b32 v%d, 4, v%d' % (vLB, vT0))
    a('v_lshl_add_u32 v%d, v%d, 5, v%d' % (vLB, vT1, vLB))
    a('v_mul_u32_u24 v%d, 56, v%d' % (vT2, vT0))
    a('s_lshl_b32 s%d, s%d, 4' % (sT0, sB))
    a('s_add_u32 s%d, s%d, s%d' % (sT0, sT0, sH))
    a('s_lshl_b32 s%d, s%d, 21' % (sT1, sT0))
    a('s_lshl_b32 s%d, s%d, 18' % (sT2, sC))
    a('s_add_u32 s%d, s%d, s%d' % (sT1, sT1, sT2))
    a('s_mul_i32 s%d, s%d, %d' % (sT2, sW, gran * 1024))
    a('s_add_u32 s%d, s%d, s%d' % (sT1, sT1, sT2))
    stamp('entry')
    a('s_waitcnt lgkmcnt(0)')
    stamp('kernarg')
    a('s_mul_i32 s%d, s%d, 896' % (sT2, sB))
    srd(rX, pX, sT2, '896')
    srd(rK, pK, sT1, str(kvoff(31) + 1024))
    srd(rV, pV, sT1, str(kvoff(31) + 1024))
    a('s_mul_i32 s%d, s%d, 112' % (sT2, sW))
    for k in range(3):
        a('buffer_load_dwordx4 %s, v%d, %s, s%d offen offset:%d%s' % (vr(vXQ + 4 * k, 4), vT2, sr(rX, 4), sT2, 16 * k, NW))
    a('buffer_load_dwordx2 %s, v%d, %s, s%d offen offset:48%s' % (vr(vXQ + 12, 2), vT2, sr(rX, 4), sT2, NW))
    a.c('sentinel clears (wave 0)')
    a('s_cmp_lg_u32 s%d, 0' % sW)
    a('s_cbranch_scc1 L_NOCLR')
    for k in range(4):
        a('v_mov_b32 v%d, -1' % (vR + k))
    a('s_lshl_b32 s%d, s%d, 14' % (sT1, sT0))
    a('s_lshl_b32 s%d, s%d, 7' % (sT2, sC))
    a('s_add_u32 s%d, s%d, s%d' % (sT2, sT2, sT1))
    a('v_lshrrev_b32 v48, 3, v%d' % vL)
    a('v_and_b32 v49, 7, v%d' % vL)
    a('v_lshlrev_b32 v48, 11, v48')
    a('v_lshl_add_u32 v48, v49, 4, v48')
    a('v_add_u32 v48, s%d, v48' % sT2)
    a('global_store_dwordx4 v48, %s, %s sc1' % (vr(vR, 4), sr(pWS, 2)), tag='clr', optional=True)
    a('s_lshl_b32 s%d, s%d, 3' % (sT2, sC))
    a('s_add_u32 s%d, s%d, s%d' % (sT2, sT2, sT1))
    a('s_add_u32 s%d, s%d, 1024' % (sT2, sT2))
    a('v_lshl_add_u32 v50, v%d, 11, s%d' % (vL, sT2))
    a('s_mov_b64 exec, 0xff')
    a('global_store_dwordx2 v50, %s, %s sc1' % (vr(vR, 2), sr(pWS, 2)), tag='clr', optional=True)
    a('s_mov_b64 exec, -1')
    a('s_mul_i32 s%d, s%d, %d' % (sT1, sB, YB))
    a('s_lshl_b32 s%d, s%d, 6' % (sT2, sN))
    a('s_add_u32 s%d, s%d, s%d' % (sT1, sT1, sT2))
    a('s_add_u32 s%d, s%d, %d' % (sT1, sT1, YREG))
    a('v_lshrrev_b32 v51, 2, v%d' % vL)
    a('v_and_b32 v52, 3, v%d' % vL)
    a('v_lshlrev_b32 v51, 13, v51')
    a('v_lshl_add_u32 v51, v52, 4, v51')
    a('v_add_u32 v51, s%d, v51' % sT1)
    a('v_add_u32 v52, 0x20000, v51')
    a('global_store_dwordx4 v51, %s, %s sc1' % (vr(vR, 4), sr(pWS, 2)), tag='clr', optional=True)
    a('s_mov_b32 exec_hi, 0xffff')
    a('global_store_dwordx4 v52, %s, %s sc1' % (vr(vR, 4), sr(pWS, 2)), tag='clr', optional=True)
    a('s_mov_b64 exec, -1')
    a.label('L_NOCLR')
    a('s_mul_i32 s%d, s%d, %d' % (sT1, sW, 56 * 8192))
    a('s_lshl_b32 s%d, s%d, 9' % (sT2, sH))
    a('s_add_u32 s%d, s%d, s%d' % (sT1, sT1, sT2))
    srd(rWQ, pWQ, sT1, '451072')

    def wq_regs(u):
        if u < 8:
            return slot(16 + 2 * u), slot(17 + 2 * u)
        return XR + 8 * (u - 8), XR + 8 * (u - 8) + 4

    kpre = cfg['kpre']
    kq = list(range(kpre))
    for u in range(14):
        if kq:
            kv_load(rK, kq.pop(0))
        A, B = wq_regs(u)
        for j, r in enumerate((A, B)):
            row = 2 * u + j
            if row == 0:
                a('buffer_load_dwordx4 %s, v%d, %s, 0 offen%s' % (vr(r, 4), vWQ, sr(rWQ, 4), NWQ))
            else:
                a('s_mov_b32 s%d, %d' % (sWQO, row * 8192))
                a('buffer_load_dwordx4 %s, v%d, %s, s%d offen%s' % (vr(r, 4), vWQ, sr(rWQ, 4), sWQO, NWQ))
    while kq:
        kv_load(rK, kq.pop(0))
    stamp('prologue issued')

    a.c('hand-off addresses')
    a('s_lshl_b32 s%d, s%d, 3' % (sT1, sT0))
    a('s_add_u32 s%d, s%d, s%d' % (sT2, sT1, sW))
    a('s_lshl_b32 s%d, s%d, 11' % (sT2, sT2))
    a('s_lshl_b32 s%d, s%d, 7' % (sWQO, sC))
    a('s_add_u32 s%d, s%d, s%d' % (sWQO, sWQO, sT2))
    a('v_lshrrev_b32 v%d, 3, v%d' % (vT0, vL))
    a('v_and_b32 v%d, 7, v%d' % (vT1, vL))
    a('v_lshl_add_u32 v%d, v%d, 4, s%d' % (vAO, vT0, sWQO))
    a('s_lshl_b32 s%d, s%d, 3' % (sWQO, sC))
    a('s_add_u32 s%d, s%d, s%d' % (sWQO, sWQO, sT2))
    a('s_add_u32 s%d, s%d, 1024' % (sWQO, sWQO))
    a('v_mov_b32 v%d, s%d' % (vAML, sWQO))
    a('s_add_u32 s%d, s%d, s%d' % (sT2, sT1, sC))
    a('s_lshl_b32 s%d, s%d, 11' % (sT2, sT2))
    a('v_lshlrev_b32 v%d, 7, v%d' % (vPO, vT1))
    a('v_lshl_add_u32 v%d, v%d, 4, v%d' % (vPO, vT0, vPO))
    a('v_add_u32 v%d, s%d, v%d' % (vPO, sT2, vPO))
    a('s_add_u32 s%d, s%d, 1024' % (sT2, sT2))
    a('v_lshl_add_u32 v%d, v%d, 3, s%d' % (vPML, vT1, sT2))
    a('s_mul_i32 s%d, s%d, %d' % (sT1, sB, YB))
    a('s_add_u32 s%d, s%d, %d' % (sT1, sT1, YREG))
    a('s_lshl_b32 s%d, s%d, 15' % (sT2, sW))
    a('s_add_u32 s%d, s%d, s%d' % (sT2, sT2, sT1))
    a('s_lshl_b32 s%d, s%d, 6' % (sWQO, sN))
    a('s_add_u32 s%d, s%d, s%d' % (sT2, sT2, sWQO))
    a('v_lshrrev_b32 v%d, 1, v%d' % (vT2, vT1))
    a('v_lshlrev_b32 v%d, 13, v%d' % (vAY, vT2))
    a('v_and_b32 v%d, 1, v%d' % (vT2, vL))
    a('v_lshl_add_u32 v%d, v%d, 5, v%d' % (vAY, vT2, vAY))
    a('v_lshrrev_b32 v%d, 5, v%d' % (vT2, vL))
    a('v_lshl_add_u32 v%d, v%d, 4, v%d' % (vAY, vT2, vAY))
    a('v_bfe_u32 v%d, v%d, 4, 1' % (vT2, vL))
    a('v_lshl_add_u32 v%d, v%d, 3, v%d' % (vAY, vT2, vAY))
    a('v_add_u32 v%d, s%d, v%d' % (vAY, sT2, vAY))
    a('s_min_u32 s%d, s%d, 27' % (sT2, sN))
    a('s_lshl_b32 s%d, s%d, 13' % (sT2, sT2))
    a('s_add_u32 s%d, s%d, s%d' % (sT2, sT2, sT1))
    a('v_and_b32 v%d, 15, v%d' % (vT2, vL))
    a('v_lshlrev_b32 v%d, 6, v%d' % (vPY, vT2))
    a('v_lshrrev_b32 v%d, 4, v%d' % (vT2, vL))
    a('v_lshl_add_u32 v%d, v%d, 4, v%d' % (vPY, vT2, vPY))
    a('v_add_u32 v%d, s%d, v%d' % (vPY, sT2, vPY))
    a('s_lshl_b32 s%d, s%d, 10' % (sT1, sW))
    a('v_add_u32 v%d, s%d, v%d' % (vLQW, sT1, vLB))
    a('s_mul_i32 s%d, s%d, %d' % (sT1, sW, OSTR))
    a('s_add_u32 s%d, s%d, %d' % (sT1, sT1, OBUF))
    a('v_add_u32 v%d, s%d, v%d' % (vLOW, sT1, vLB))
    a('v_mul_u32_u24 v%d, %d, v%d' % (vLOR, OSTR, vT1))
    a('v_lshl_add_u32 v%d, v%d, 4, v%d' % (vLOR, vT0, vLOR))
    a('s_lshl_b32 s%d, s%d, 7' % (sT1, sW))
    a('s_add_u32 s%d, s%d, %d' % (sT1, sT1, OBUF))
    a('v_add_u32 v%d, s%d, v%d' % (vLOR, sT1, vLOR))
    a('s_mov_b32 s%d, 0xcccccccc' % sM1)
    a('s_mov_b32 s%d, 0xcccccccc' % (sM1 + 1))
    a('s_mov_b32 s%d, 0xaaaaaaaa' % sM0)
    a('s_mov_b32 s%d, 0xaaaaaaaa' % (sM0 + 1))

    a.c('q phase')
    knext = kpre
    for u in range(14):
        A, B = wq_regs(u)
        for k in range(4):
            a('v_perm_b32 v%d, v%d, v%d, s%d' % (vT + 2 * k, B + k, A + k, sSELLO))
            a('v_perm_b32 v%d, v%d, v%d, s%d' % (vT + 2 * k + 1, B + k, A + k, sSELHI))
        if u == 0:
            stamp('first wq pair')
            a.save('flag')
            a('s_cmp_lg_u32 s%d, 0' % sW)
            a('s_cbranch_scc1 L_NOFLAG')
            a('s_lshl_b32 s%d, s%d, 2' % (sT1, sT0))
            a('v_mov_b32 v%d, s%d' % (vT0, sT1))
            a('v_mov_b32 v%d, 1' % vT1)
            a.wait_tag('clr')
            a('s_mov_b64 exec, 1')
            a('global_atomic_add v%d, v%d, %s' % (vT0, vT1, sr(pDBG, 2)), optional=True)
            a('s_mov_b64 exec, -1')
            a.label('L_NOFLAG')
            a.restore('flag')
        lim = 16 + 2 * u + 2 if u < 8 else 32
        while knext < min(lim, 32) and (knext < 16 or u >= (knext - 16) // 2):
            kv_load(rK, knext)
            knext += 1
        for j in range(8):
            c = '0' if u == 0 else 'v%d' % (vACC + j)
            a('v_dot2_f32_bf16 v%d, v%d, v%d, %s' % (vACC + j, vT + j, vXQ + u, c))
    assert knext == 32
    stamp('q dots done')
    for j in range(4):
        a('v_permlane32_swap_b32 v%d, v%d' % (vACC + j, vACC + j + 4))
    for j in range(4):
        a('v_add_f32 v%d, v%d, v%d' % (vR + j, vACC + j, vACC + j + 4))
    a('ds_write_b128 v%d, %s' % (vLQW, vr(vR, 4)))
    v_upto(cfg['nve'])
    a('s_waitcnt lgkmcnt(0)')
    a('s_barrier')
    stamp('B1')
    for k in range(8):
        a('ds_read_b128 %s, v%d offset:%d' % (vr(XR + 4 * k, 4), vLB, QBUF + k * 1024))
    for k in range(1, 8):
        for j in range(4):
            a('v_add_f32 v%d, v%d, v%d' % (XR + j, XR + j, XR + 4 * k + j))
    a('v_cvt_pk_bf16_f32 v%d, v%d, v%d' % (vQ, XR, XR + 1))
    a('v_cvt_pk_bf16_f32 v%d, v%d, v%d' % (vQ + 1, XR + 2, XR + 3))
    a('v_mov_b32 v%d, v%d' % (vQ + 2, vQ))
    a('v_mov_b32 v%d, v%d' % (vQ + 3, vQ + 1))
    a('v_permlane32_swap_b32 v%d, v%d' % (vQ, vQ + 2))
    a('v_permlane32_swap_b32 v%d, v%d' % (vQ + 1, vQ + 3))
    stamp('q ready')

    def small_loads():
        a.c('w1 / w2 / wo / gate / bias loads')
        a('s_mul_i32 s%d, s%d, %d' % (sT1, sW6, 64 * 3584))
        a('s_lshl_b32 s%d, s%d, 5' % (sT2, sSL))
        a('s_add_u32 s%d, s%d, s%d' % (sT1, sT1, sT2))
        if cfg['skip7']:
            a('s_cmp_eq_u32 s%d, 7' % sW)
            a('s_cselect_b32 s%d, 0, s%d' % (sKVO + 1, sVAL))
        else:
            a('s_mov_b32 s%d, s%d' % (sKVO + 1, sVAL))
        a('s_and_b32 s%d, s%d, %d' % (sWQO, sKVO + 1, 63 * 3584 + 32))
        srd(rW1, pW1, sT1, 's%d' % sWQO)
        a('s_and_b32 s%d, s%d, 32' % (sWQO, sVAL))
        srd(rB1, pB1, sT2, 's%d' % sWQO)
        a('s_mul_i32 s%d, s%d, %d' % (sT1, sSL, 16 * 896))
        a('s_lshl_b32 s%d, s%d, 7' % (sT2, sW6))
        a('s_add_u32 s%d, s%d, s%d' % (sT1, sT1, sT2))
        a('s_and_b32 s%d, s%d, %d' % (sWQO, sKVO + 1, 15 * 896 + 128))
        srd(rW2, pW2, sT1, 's%d' % sWQO)
        a('s_lshl_b32 s%d, s%d, 8' % (sT1, sH))
        a('s_lshl_b32 s%d, s%d, 5' % (sWQO, sC))
        a('s_add_u32 s%d, s%d, s%d' % (sT1, sT1, sWQO))
        a('s_mul_i32 s%d, s%d, 896' % (sT1, sT1))
        a('s_add_u32 s%d, s%d, s%d' % (sT1, sT1, sT2))
        if cfg['skip7']:
            a('s_cmp_eq_u32 s%d, 7' % sW)
            a('s_cselect_b32 s%d, 0, %d' % (sWQO, 31 * 896 + 128))
            srd(rWO, pWO, sT1, 's%d' % sWQO)
        else:
            srd(rWO, pWO, sT1, str(31 * 896 + 128))
        srd(rG, pG, None, '896')
        srd(rB2, pB2, None, '896')
        a('v_and_b32 v%d, 31, v%d' % (vT0, vL))
        a('v_mul_u32_u24 v%d, 7168, v%d' % (vT1, vT0))
        a('v_lshrrev_b32 v%d, 5, v%d' % (vT2, vL))
        a('v_lshl_add_u32 v%d, v%d, 4, v%d' % (vT1, vT2, vT1))
        a('buffer_load_dwordx4 %s, v%d, %s, 0 offen%s' % (vr(vW1, 4), vT1, sr(rW1, 4), NW1))
        a('buffer_load_dwordx4 %s, v%d, %s, 0 offen offset:3584%s' % (vr(vW1 + 4, 4), vT1, sr(rW1, 4), NW1))
        a('v_lshlrev_b32 v%d, 2, v%d' % (vT0, vT0))
        a('buffer_load_dword v%d, v%d, %s, s%d offen%s' % (vXW1, vT0, sr(rX, 4), sT2, NW))
        a('buffer_load_dwordx4 %s, v%d, %s, 0 offen%s' % (vr(vXG, 4), vO16, sr(rX, 4), NW))
        a('buffer_load_dwordx4 %s, v%d, %s, 0 offen%s' % (vr(vGW, 4), vO16, sr(rG, 4), NW))
        a('v_lshrrev_b32 v%d, 3, v%d' % (vT0, vL))
        a('v_and_b32 v%d, 7, v%d' % (vT1, vL))
        a('v_lshlrev_b32 v%d, 4, v%d' % (vT1, vT1))
        a('v_lshlrev_b32 v%d, 2, v%d' % (vT2, vT0))
        a('buffer_load_dword v%d, v%d, %s, 0 offen%s' % (vB1, vT2, sr(rB1, 4), NW))
        a('v_mul_u32_u24 v%d, 1792, v%d' % (vT2, vT0))
        a('v_add_u32 v%d, v%d, v%d' % (vT2, vT2, vT1))
        a('buffer_load_dwordx4 %s, v%d, %s, 0 offen%s' % (vr(vW2, 4), vT2, sr(rW2, 4), NW2))
        a('buffer_load_dwordx4 %s, v%d, %s, 0 offen offset:896%s' % (vr(vW2 + 4, 4), vT2, sr(rW2, 4), NW2))
        a('v_mul_u32_u24 v%d, 3584, v%d' % (vT2, vT0))
        a('v_add_u32 v%d, v%d, v%d' % (vT2, vT2, vT1))
        for k in range(4):
            a('buffer_load_dwordx4 %s, v%d, %s, 0 offen offset:%d%s' % (vr(vWO + 4 * k, 4), vT2, sr(rWO, 4), 896 * k, NWO))
        a('s_min_u32 s%d, s%d, 27' % (sT1, sN))
        a('s_lshl_b32 s%d, s%d, 5' % (sT1, sT1))
        a('v_lshrrev_b32 v%d, 4, v%d' % (vT0, vL))
        a('v_lshlrev_b32 v%d, 3, v%d' % (vT0, vT0))
        a('buffer_load_dwordx2 %s, v%d, %s, s%d offen%s' % (vr(vB2, 2), vT0, sr(rB2, 4), sT1, NW))

    small_loads()

    a.c('K phase')
    pool = [24, 25, 26, 27, 28, 29, 30, 56, 57, 58, 59, 60, 61, 62, 63, 48, 49, 50, 51, 52, 53, 54, 55]
    if not cfg['stamps']:
        pool.append(31)
    levels = {1: [], 2: [], 3: [], 4: [], 5: []}

    def merge(level, x, y):
        if level == 1:
            d = pool.pop(0)
            a('v_add_f32_dpp v%d, v%d, v%d row_ror:8 row_mask:0xf bank_mask:0x3' % (d, x, x))
            a('v_add_f32_dpp v%d, v%d, v%d row_ror:8 row_mask:0xf bank_mask:0xc' % (d, y, y))
            pool.extend([x, y])
            return d
        if level == 2:
            d = pool.pop(0)
            a('v_add_f32_dpp v%d, v%d, v%d row_shl:4 row_mask:0xf bank_mask:0x5' % (d, x, x))
            a('v_add_f32_dpp v%d, v%d, v%d row_shr:4 row_mask:0xf bank_mask:0xa' % (d, y, y))
            pool.extend([x, y])
            return d
        qp = '[2,3,0,1]' if level == 3 else '[1,0,3,2]'
        msk = sM1 if level == 3 else sM0
        a('v_add_f32_dpp v%d, v%d, v%d quad_perm:%s row_mask:0xf bank_mask:0xf' % (x, x, x, qp))
        a('v_add_f32_dpp v%d, v%d, v%d quad_perm:%s row_mask:0xf bank_mask:0xf' % (y, y, y, qp))
        a('v_cndmask_b32_e64 v%d, v%d, v%d, %s' % (x, x, y, sr(msk, 2)))
        pool.append(y)
        return x

    def tree_step(gap, flush=False):
        for level in (4, 3, 2, 1):
            L = levels[level]
            while len(L) >= 2 and (flush or (L[0][1] < gap and L[1][1] < gap)):
                x = L.pop(0)[0]
                y = L.pop(0)[0]
                levels[level + 1].append((merge(level, x, y), gap))
                if not flush:
                    break

    for j in range(16):
        t0, t1 = 2 * j, 2 * j + 1
        x = pool.pop(0)
        y = pool.pop(0)
        for k in range(4):
            a('v_dot2_f32_bf16 v%d, v%d, v%d, %s' % (x, slot(t0) + k, vQ + k, '0' if k == 0 else 'v%d' % x))
            a('v_dot2_f32_bf16 v%d, v%d, v%d, %s' % (y, slot(t1) + k, vQ + k, '0' if k == 0 else 'v%d' % y))
        v_upto(min(cfg['nve'] + ((cfg['nvk'] - cfg['nve']) * (j + 1) + 15) // 16, 2 * j + 6))
        tree_step(j)
        a('v_permlane16_swap_b32 v%d, v%d' % (x, y))
        a('v_add_f32 v%d, v%d, v%d' % (x, x, y))
        pool.append(y)
        levels[1].append((x, j))
        if j in (0, 7):
            stamp('K pair %d' % j)
    for g in range(16, 24):
        tree_step(g)
    assert len(levels[5]) == 1 and not any(levels[l] for l in (1, 2, 3, 4)), levels
    vS = levels[5][0][0]
    stamp('K done')
    vM = 54
    vE, vTM = 28, 29

    rnd_bf16(30, vS)
    vS = 30
    a('v_mov_b32 v%d, v%d' % (vE, vS))
    allred('v_max_f32', vE, vTM)
    a('s_lshl_b32 s%d, s%d, 2' % (sT1, sW))
    a('s_add_u32 s%d, s%d, %d' % (sT1, sT1, MX))
    a('v_mov_b32 v%d, s%d' % (vT0, sT1))
    a('ds_write_b32 v%d, v%d' % (vT0, vE))

    a.c('h partial')
    for k in range(4):
        a('v_perm_b32 v%d, v%d, v%d, s%d' % (vU + 2 * k, vW1 + 4 + k, vW1 + k, sSELLO))
        a('v_perm_b32 v%d, v%d, v%d, s%d' % (vU + 2 * k + 1, vW1 + 4 + k, vW1 + k, sSELHI))
    for j in range(8):
        a('v_dot2_f32_bf16 v%d, v%d, v%d, 0' % (vW1 + j, vU + j, vXW1))
    for j in range(4):
        a('v_permlane16_swap_b32 v%d, v%d' % (vW1 + j, vW1 + j + 4))
    for j in range(4):
        a('v_add_f32 v%d, v%d, v%d' % (vW1 + j, vW1 + j, vW1 + j + 4))
    for j in range(2):
        a('v_add_f32_dpp v%d, v%d, v%d row_ror:8 row_mask:0xf bank_mask:0x3' % (vW1 + 4 + j, vW1 + j, vW1 + j))
        a('v_add_f32_dpp v%d, v%d, v%d row_ror:8 row_mask:0xf bank_mask:0xc' % (vW1 + 4 + j, vW1 + 2 + j, vW1 + 2 + j))
    a('v_add_f32_dpp v%d, v%d, v%d row_shl:4 row_mask:0xf bank_mask:0x5' % (vW1, vW1 + 4, vW1 + 4))
    a('v_add_f32_dpp v%d, v%d, v%d row_shr:4 row_mask:0xf bank_mask:0xa' % (vW1, vW1 + 5, vW1 + 5))
    a('v_add_f32_dpp v%d, v%d, v%d quad_perm:[2,3,0,1] row_mask:0xf bank_mask:0xf' % (vW1, vW1, vW1))
    a('v_add_f32_dpp v%d, v%d, v%d quad_perm:[1,0,3,2] row_mask:0xf bank_mask:0xf' % (vW1, vW1, vW1))
    a('s_lshl_b32 s%d, s%d, 6' % (sT1, sW))
    a('s_add_u32 s%d, s%d, %d' % (sT1, sT1, HB))
    a('v_and_b32 v%d, 0x3c, v%d' % (vT1, vL))
    a('v_add_u32 v%d, s%d, v%d' % (vT1, sT1, vT1))
    a('ds_write_b32 v%d, v%d' % (vT1, vW1))
    v_upto(cfg['nvb'])
    a('s_waitcnt lgkmcnt(0)')
    a('s_barrier')
    stamp('B2')

    a('v_mov_b32 v%d, %d' % (vT0, MX))
    a('ds_read_b128 %s, v%d' % (vr(vU, 4), vT0))
    a('ds_read_b128 %s, v%d offset:16' % (vr(vU + 4, 4), vT0))
    a('v_max3_f32 v%d, v%d, v%d, v%d' % (vM, vU, vU + 1, vU + 2))
    a('v_max3_f32 v%d, v%d, v%d, v%d' % (vM, vM, vU + 3, vU + 4))
    a('v_max3_f32 v%d, v%d, v%d, v%d' % (vM, vM, vU + 5, vU + 6))
    a('v_max_f32 v%d, v%d, v%d' % (vM, vM, vU + 7))
    CS = f2h(LOG2E / 16.0)
    a('v_sub_f32 v%d, v%d, v%d' % (vE, vS, vM))
    a('v_mul_f32 v%d, %s, v%d' % (vE, CS, vE))
    a('v_exp_f32 v%d, v%d' % (vE, vE))
    a('v_mov_b32 v%d, v%d' % (vS, vE))
    a('v_mov_b32 v%d, v%d' % (vTM, vE))
    a('v_permlane16_swap_b32 v%d, v%d' % (vS, vTM))
    a('v_cvt_pk_bf16_f32 v%d, v%d, v%d' % (vS, vS, vTM))

    def rev4(x):
        return ((x & 1) << 3) | ((x & 2) << 1) | ((x & 4) >> 1) | ((x & 8) >> 3)
    for u in range(16):
        a('ds_swizzle_b32 v%d, v%d offset:%d' % (vPP + u, vS, rev4(u) << 5))
    allred('v_add_f32', vE, vTM)
    a('s_lshl_b32 s%d, s%d, 2' % (sT1, sW))
    a('s_add_u32 s%d, s%d, %d' % (sT1, sT1, LW))
    a('v_mov_b32 v%d, s%d' % (vT0, sT1))
    a('ds_write_b32 v%d, v%d' % (vT0, vE))
    stamp('softmax done')

    vHP = vXW1
    vB2F = 24
    WP = [[None] * 8, [None] * 8]

    def do_gate():
        a.c('gate')
        ta, tb, tc, td = vU, vU + 1, vU + 2, vU + 3
        vZ = vU + 4
        a('s_mov_b32 s%d, 0x3f803f80' % sT2)
        for k in range(4):
            a('v_lshlrev_b32 v%d, 16, v%d' % (ta, vXG + k))
            a('v_lshlrev_b32 v%d, 16, v%d' % (tb, vGW + k))
            a('v_and_b32 v%d, 0xffff0000, v%d' % (tc, vXG + k))
            a('v_and_b32 v%d, 0xffff0000, v%d' % (td, vGW + k))
            a('v_mul_f32 v%d, v%d, v%d' % (ta, ta, tb))
            a('v_mul_f32 v%d, v%d, v%d' % (tc, tc, td))
            a('v_cvt_pk_bf16_f32 v%d, v%d, v%d' % (ta, ta, tc))
            a('v_dot2_f32_bf16 v%d, v%d, s%d, %s' % (vZ, ta, sT2, '0' if k == 0 else 'v%d' % vZ))
        allred('v_add_f32', vZ, ta)
        rnd_bf16(vZ, vZ)
        a('v_mul_f32 v%d, %s, v%d' % (vZ, f2h(-LOG2E), vZ))
        a('v_exp_f32 v%d, v%d' % (vZ, vZ))
        a('v_add_f32 v%d, 1.0, v%d' % (vZ, vZ))
        a('v_rcp_f32 v%d, v%d' % (vZ, vZ))
        rnd_bf16(vG, vZ)
        a('v_sub_f32 v%d, 1.0, v%d' % (vOMG, vG))
        rnd_bf16(vOMG, vOMG)

    def do_ffn1():
        a.c('ffn second layer partial')
        a('v_lshrrev_b32 v%d, 3, v%d' % (vT0, vL))
        a('v_lshlrev_b32 v%d, 3, v%d' % (vT0, vT0))
        hb = vW1
        regs = [vXG, vXG + 2, vXG + 4, vXG + 6, vW1, vW1 + 2, vW1 + 4]
        for k in range(7):
            a('ds_read_b64 %s, v%d offset:%d' % (vr(regs[k], 2), vT0, HB + 64 * k))
        for k in range(1, 7):
            for j in range(2):
                a('v_add_f32 v%d, v%d, v%d' % (regs[0] + j, regs[0] + j, regs[k] + j))
        h0, h1 = regs[0], regs[0] + 1
        t0_, t1_ = vU, vU + 1
        a('v_cvt_pk_bf16_f32 v%d, v%d, v%d' % (t0_, h0, h1))
        a('v_lshlrev_b32 v%d, 16, v%d' % (h0, t0_))
        a('v_and_b32 v%d, 0xffff0000, v%d' % (h1, t0_))
        a('v_lshlrev_b32 v%d, 16, v%d' % (t0_, vB1))
        a('v_and_b32 v%d, 0xffff0000, v%d' % (t1_, vB1))
        a('v_add_f32 v%d, v%d, v%d' % (h0, h0, t0_))
        a('v_add_f32 v%d, v%d, v%d' % (h1, h1, t1_))
        a('v_cvt_pk_bf16_f32 v%d, v%d, v%d' % (t0_, h0, h1))
        a('v_lshlrev_b32 v%d, 16, v%d' % (h0, t0_))
        a('v_and_b32 v%d, 0xffff0000, v%d' % (h1, t0_))
        C1 = -2.0 * LOG2E * 0.7978845608028654
        C2 = C1 * 0.044715
        a('s_mov_b32 s%d, %s' % (sT1, f2h(C2)))
        a('s_mov_b32 s%d, %s' % (sT2, f2h(C1)))
        for hh, tt in ((h0, t0_), (h1, t1_)):
            a('v_mul_f32 v%d, v%d, v%d' % (tt, hh, hh))
        for hh, tt in ((h0, t0_), (h1, t1_)):
            a('v_mul_f32 v%d, s%d, v%d' % (tt, sT1, tt))
        for hh, tt in ((h0, t0_), (h1, t1_)):
            a('v_add_f32 v%d, s%d, v%d' % (tt, sT2, tt))
        for hh, tt in ((h0, t0_), (h1, t1_)):
            a('v_mul_f32 v%d, v%d, v%d' % (tt, tt, hh))
        for hh, tt in ((h0, t0_), (h1, t1_)):
            a('v_exp_f32 v%d, v%d' % (tt, tt))
        for hh, tt in ((h0, t0_), (h1, t1_)):
            a('v_add_f32 v%d, 1.0, v%d' % (tt, tt))
        for hh, tt in ((h0, t0_), (h1, t1_)):
            a('v_rcp_f32 v%d, v%d' % (tt, tt))
        for hh, tt in ((h0, t0_), (h1, t1_)):
            a('v_mul_f32 v%d, v%d, v%d' % (hh, hh, tt))
        a('v_cvt_pk_bf16_f32 v%d, v%d, v%d' % (vHP, h0, h1))

    def do_ffn2():
        for k in range(4):
            a('v_perm_b32 v%d, v%d, v%d, s%d' % (vU + 2 * k, vW2 + 4 + k, vW2 + k, sSELLO))
            a('v_perm_b32 v%d, v%d, v%d, s%d' % (vU + 2 * k + 1, vW2 + 4 + k, vW2 + k, sSELHI))
        for j in range(8):
            a('v_dot2_f32_bf16 v%d, v%d, v%d, 0' % (vACCF + j, vU + j, vHP))
        a('s_nop 1')
        for j in range(8):
            a('v_mul_f32 v%d, v%d, v%d' % (vACCF + j, vACCF + j, vOMG))
        a('v_lshlrev_b32 v%d, 16, v%d' % (vB2F, vB2))
        a('v_and_b32 v%d, 0xffff0000, v%d' % (vB2F + 1, vB2))
        a('v_lshlrev_b32 v%d, 16, v%d' % (vB2F + 2, vB2 + 1))
        a('v_and_b32 v%d, 0xffff0000, v%d' % (vB2F + 3, vB2 + 1))
        for j in range(4):
            a('v_mul_f32 v%d, v%d, v%d' % (vB2F + j, vB2F + j, vOMG))

    def do_wop():
        a.c('wo pre-permute')
        spare = vW2
        for p in range(2):
            A, B = vWO + 8 * p, vWO + 8 * p + 4
            for k in range(4):
                a('v_perm_b32 v%d, v%d, v%d, s%d' % (spare, B + k, A + k, sSELLO))
                a('v_perm_b32 v%d, v%d, v%d, s%d' % (B + k, B + k, A + k, sSELHI))
                WP[p][2 * k] = spare
                WP[p][2 * k + 1] = B + k
                spare = A + k


    a.c('V phase')
    side = {0: do_gate, 1: do_ffn1, 2: do_ffn2, 3: do_wop}
    for u in range(16):
        v_upto(2 * u + cfg['win'])
        A, B = vslot(2 * u), vslot(2 * u + 1)
        for k in range(4):
            a('v_perm_b32 v%d, v%d, v%d, s%d' % (vU + 2 * k, B + k, A + k, sSELLO))
            a('v_perm_b32 v%d, v%d, v%d, s%d' % (vU + 2 * k + 1, B + k, A + k, sSELHI))
        for j in range(8):
            c = '0' if u == 0 else 'v%d' % (vACC + j)
            a('v_dot2_f32_bf16 v%d, v%d, v%d, %s' % (vACC + j, vU + j, vPP + u, c))
        if u in side:
            side[u]()
        if u == cfg['chk_u']:
            a('s_cmp_lg_u32 s%d, 7' % sW)
            a('s_cbranch_scc1 L_NOCHK')
            a('v_and_b32 v%d, 15, v%d' % (vT0, vL))
            a('s_lshl_b32 s%d, s%d, 4' % (sT1, sB))
            a('v_add_u32 v%d, s%d, v%d' % (vT0, sT1, vT0))
            a('v_lshlrev_b32 v%d, 2, v%d' % (vSPARE, vT0))
            a('global_load_dword v%d, v%d, %s sc1' % (vCHK, vSPARE, sr(pDBG, 2)), optional=True)
            a.label('L_NOCHK')
        if u in (0, 7):
            stamp('V pair %d' % u)
    stamp('V done')
    for j in range(4):
        a('v_permlane32_swap_b32 v%d, v%d' % (vACC + j, vACC + j + 4))
    for j in range(4):
        a('v_add_f32 v%d, v%d, v%d' % (vR + j, vACC + j, vACC + j + 4))
    a('ds_write_b128 v%d, %s' % (vLOW, vr(vR, 4)))
    a('v_and_b32 v%d, 7, v%d' % (vT0, vL))
    a('v_lshlrev_b32 v%d, 2, v%d' % (vT0, vT0))
    a('s_waitcnt lgkmcnt(0)')
    a('s_barrier')
    stamp('B3')
    vO = 48
    a('ds_read_b128 %s, v%d' % (vr(vO, 4), vLOR))
    a('ds_read_b32 v%d, v%d offset:%d' % (vM + 1, vT0, LW))
    five = [vO, vO + 1, vO + 2, vO + 3, vM + 1]
    for ctl in ('quad_perm:[1,0,3,2]', 'quad_perm:[2,3,0,1]', 'row_half_mirror'):
        for r in five:
            a('v_add_f32_dpp v%d, v%d, v%d %s row_mask:0xf bank_mask:0xf' % (r, r, r, ctl))
    a('s_mov_b32 exec_lo, 0x01010101')
    a('s_mov_b32 exec_hi, 0x01010101')
    a('global_store_dwordx4 v%d, %s, %s sc1' % (vAO, vr(vO, 4), sr(pWS, 2)))
    a('s_mov_b64 exec, 1')
    a('global_store_dwordx2 v%d, %s, %s sc1' % (vAML, vr(vM, 2), sr(pWS, 2)))
    a('s_mov_b64 exec, -1')
    stamp('o published')
    if cfg['stop'] == 'pub':
        a('s_branch L_FIN')
    a('s_cmp_lg_u32 s%d, 7' % sW)
    a.save('w7')
    a('s_cbranch_scc1 L_YPART')
    a('v_cmp_ne_u32 vcc, 8, v%d' % vCHK)
    a.save('chk')
    a('s_cbranch_vccnz L_CHK_SLOW')
    a.label('L_CHK_OK')

    a.c('hop 1')
    a('s_mov_b32 s%d, %d' % (sSPIN, cfg['spin']))
    vPo, vPm = 64, 68
    a.label('L_POLL1')
    a('global_load_dwordx4 %s, v%d, %s sc1' % (vr(vPo, 4), vPO, sr(pWS, 2)))
    a('global_load_dwordx2 %s, v%d, %s sc1' % (vr(vPm, 2), vPML, sr(pWS, 2)))
    a('s_sub_u32 s%d, s%d, 1' % (sSPIN, sSPIN))
    a('s_cmp_eq_u32 s%d, 0' % sSPIN)
    a('s_waitcnt vmcnt(0)')
    a('s_cbranch_scc1 L_POLL1_DONE')
    a('v_max3_u32 v70, v64, v65, v66')
    a('v_max3_u32 v71, v67, v68, v69')
    a('v_max_u32 v70, v70, v71')
    a('v_cmp_eq_u32 vcc, -1, v70')
    a('s_cbranch_vccnz L_POLL1')
    a.label('L_POLL1_DONE')
    a('s_nop 0')
    stamp('hop1 data')
    m, l, Mx, w_, L_ = 68, 69, 70, 71, 72
    a('v_max_f32_dpp v%d, v%d, v%d quad_perm:[1,0,3,2] row_mask:0xf bank_mask:0xf' % (Mx, m, m))
    a('v_max_f32_dpp v%d, v%d, v%d quad_perm:[2,3,0,1] row_mask:0xf bank_mask:0xf' % (Mx, Mx, Mx))
    a('v_max_f32_dpp v%d, v%d, v%d row_half_mirror row_mask:0xf bank_mask:0xf' % (Mx, Mx, Mx))
    a('v_sub_f32 v%d, v%d, v%d' % (w_, m, Mx))
    a('v_mul_f32 v%d, %s, v%d' % (w_, CS, w_))
    a('v_exp_f32 v%d, v%d' % (w_, w_))
    a('v_mul_f32 v%d, v%d, v%d' % (L_, l, w_))
    for j in range(4):
        a('v_mul_f32 v%d, v%d, v%d' % (vPo + j, vPo + j, w_))
    five = [L_, vPo, vPo + 1, vPo + 2, vPo + 3]
    for ctl in ('quad_perm:[1,0,3,2]', 'quad_perm:[2,3,0,1]', 'row_half_mirror'):
        for r in five:
            a('v_add_f32_dpp v%d, v%d, v%d %s row_mask:0xf bank_mask:0xf' % (r, r, r, ctl))
    a('v_rcp_f32 v%d, v%d' % (L_, L_))
    a('v_mul_f32 v%d, v%d, v%d' % (L_, L_, vG))
    for j in range(4):
        a('v_mul_f32 v%d, v%d, v%d' % (vPo + j, vPo + j, L_))
    a('v_cvt_pk_bf16_f32 v74, v%d, v%d' % (vPo, vPo + 1))
    a('v_cvt_pk_bf16_f32 v75, v%d, v%d' % (vPo + 2, vPo + 3))
    a('v_lshrrev_b32 v%d, 3, v%d' % (vT0, vL))
    a('v_lshlrev_b32 v%d, 3, v%d' % (vT0, vT0))
    a('s_mov_b32 exec_lo, 0x01010101')
    a('s_mov_b32 exec_hi, 0x01010101')
    a('ds_write_b64 v%d, v[74:75] offset:%d' % (vT0, OCB))
    a('s_mov_b64 exec, -1')
    a('s_waitcnt lgkmcnt(0)')
    a('s_barrier')
    stamp('B4')
    a('s_cmp_ge_u32 s%d, 28' % sN)
    a('s_cbranch_scc1 L_FIN')
    a('s_mov_b32 s%d, %d' % (sSPIN, cfg['spin']))
    a('v_add_u32 v%d, 4096, v%d' % (vT0, vPY))
    a.label('L_POLL2')
    for k in range(8):
        a('global_load_dwordx4 %s, v%d, %s offset:%d sc1' % (vr(64 + 4 * k, 4), vPY if k < 4 else vT0, sr(pWS, 2), (k % 4) * 1024))
    a('s_sub_u32 s%d, s%d, 1' % (sSPIN, sSPIN))
    a('s_cmp_eq_u32 s%d, 0' % sSPIN)
    a('s_waitcnt vmcnt(0)')
    a('s_cbranch_scc1 L_POLL2_DONE')
    a('v_max3_u32 v100, v64, v65, v66')
    a('v_max3_u32 v101, v67, v68, v69')
    for k in range(70, 94, 4):
        a('v_max3_u32 v100, v100, v%d, v%d' % (k, k + 1))
        a('v_max3_u32 v101, v101, v%d, v%d' % (k + 2, k + 3))
    a('v_max3_u32 v100, v100, v94, v95')
    a('v_max_u32 v100, v100, v101')
    a('v_cmp_eq_u32 vcc, -1, v100')
    a('s_cbranch_vccnz L_POLL2')
    a.label('L_POLL2_DONE')
    a('s_nop 0')
    stamp('hop2 data')
    for step in (16, 8, 4):
        for base in range(64, 64 + step, 4):
            for j in range(4):
                a('v_add_f32 v%d, v%d, v%d' % (base + j, base + j, base + step + j))
    for n in (8, 4, 2, 1):
        for j in range(4):
            a('v_add_f32_dpp v%d, v%d, v%d row_ror:%d row_mask:0xf bank_mask:0xf' % (64 + j, 64 + j, 64 + j, n))
    for j in range(4):
        a('v_add_f32 v%d, v%d, v%d' % (64 + j, 64 + j, vB2F + j))
    a('v_cvt_pk_bf16_f32 v64, v64, v65')
    a('v_cvt_pk_bf16_f32 v65, v66, v67')
    a('s_mul_i32 s%d, s%d, 896' % (sT1, sB))
    a('s_lshl_b32 s%d, s%d, 5' % (sT2, sN))
    a('s_add_u32 s%d, s%d, s%d' % (sT1, sT1, sT2))
    a('v_lshrrev_b32 v%d, 4, v%d' % (vT0, vL))
    a('v_lshl_add_u32 v%d, v%d, 3, s%d' % (vT0, vT0, sT1))
    a('s_mov_b32 exec_lo, 0x00010001')
    a('s_mov_b32 exec_hi, 0x00010001')
    a('global_store_dwordx2 v%d, v[64:65], %s' % (vT0, sr(pOUT, 2)))
    a('s_mov_b64 exec, -1')
    stamp('out stored')

    a('s_branch L_FIN')

    a.label('L_YPART')
    a.restore('w7')
    a('v_lshrrev_b32 v%d, 3, v%d' % (vT0, vL))
    a('v_lshlrev_b32 v%d, 3, v%d' % (vT0, vT0))
    a('s_barrier')
    a('ds_read_b64 v[74:75], v%d offset:%d' % (vT0, OCB))
    for j in range(8):
        a('v_dot2_f32_bf16 v%d, v%d, v74, v%d' % (vACCF + j, WP[0][j], vACCF + j))
    for j in range(8):
        a('v_dot2_f32_bf16 v%d, v%d, v75, v%d' % (vACCF + j, WP[1][j], vACCF + j))
    y = vACCF
    for j in range(4):
        a('v_permlane32_swap_b32 v%d, v%d' % (y + j, y + j + 4))
    for j in range(4):
        a('v_add_f32 v%d, v%d, v%d' % (y + j, y + j, y + j + 4))
    a('v_permlane16_swap_b32 v%d, v%d' % (y, y + 2))
    a('v_permlane16_swap_b32 v%d, v%d' % (y + 1, y + 3))
    a('v_add_f32 v%d, v%d, v%d' % (y, y, y + 2))
    a('v_add_f32 v%d, v%d, v%d' % (y + 1, y + 1, y + 3))
    a('v_add_f32_dpp v%d, v%d, v%d row_ror:8 row_mask:0xf bank_mask:0xf' % (y, y, y))
    a('v_add_f32_dpp v%d, v%d, v%d row_ror:8 row_mask:0xf bank_mask:0xf' % (y + 1, y + 1, y + 1))
    a('s_mov_b32 exec_lo, 0x00ff00ff')
    a('s_mov_b32 exec_hi, 0x00ff00ff')
    a('global_store_dwordx2 v%d, %s, %s sc1' % (vAY, vr(y, 2), sr(pWS, 2)))
    a('s_mov_b64 exec, -1')
    stamp('y published')

    a.label('L_FIN')
    if cfg['stamps']:
        a('s_nop 4')
        a('s_memrealtime s[100:101]')
        a('s_waitcnt lgkmcnt(0)')
        a('v_writelane_b32 v31, s100, 63')
        a('s_lshl_b32 s94, s2, 3')
        a('s_add_u32 s94, s94, s%d' % sW)
        a('s_lshl_b32 s94, s94, 8')
        a('s_add_u32 s94, s94, %d' % STREG)
        a('v_lshl_add_u32 v30, v%d, 2, s94' % vL)
        a('global_store_dword v30, v31, %s' % sr(pWS, 2))
    a('s_endpgm')

    a.label('L_CHK_SLOW')
    a.restore('chk')
    a('s_mov_b32 s%d, %d' % (sSPIN, cfg['spin']))
    a.label('L_CHK_LOOP')
    a('global_load_dword v%d, v%d, %s sc1' % (vCHK, vSPARE, sr(pDBG, 2)))
    a('s_sub_u32 s%d, s%d, 1' % (sSPIN, sSPIN))
    a('s_cmp_eq_u32 s%d, 0' % sSPIN)
    a('s_waitcnt vmcnt(0)')
    a('s_cbranch_scc1 L_CHK_OK')
    a('v_cmp_ne_u32 vcc, 8, v%d' % vCHK)
    a('s_cbranch_vccnz L_CHK_LOOP')
    a('s_branch L_CHK_OK')
    a.label('L_END')
    body = a.finalize()
    return body


HEADER = open('cdna_kernels/%s.s.ref' % NAME).read().split('; Override launch geometry')[0]


def wrap(body, cfg):
    s = HEADER
    s += '; Override launch geometry by editing the next line (default: block=256,\n'
    s += '; grid=ceil(out_elems/256), lds=0). Harness parses it; keep it on one line.\n'
    s += '; @launch grid=(256,1,1) block=(512,1,1) lds=%d\n' % LDS_BYTES
    s += '.amdgcn_target "amdgcn-amd-amdhsa--gfx950"\n.text\n.globl %s_kernel\n.p2align 8\n' % NAME
    s += '.type %s_kernel,@function\n%s_kernel:\n' % (NAME, NAME)
    s += body
    s += 's_endpgm\n'
    s += '.section .rodata,"a"\n.p2align 6\n.amdhsa_kernel %s_kernel\n' % NAME
    s += '  .amdhsa_next_free_vgpr 256\n  .amdhsa_next_free_sgpr 102\n  .amdhsa_accum_offset 256\n'
    s += '  .amdhsa_group_segment_fixed_size 0\n  .amdhsa_kernarg_size 112\n  .amdhsa_user_sgpr_count 2\n'
    s += '  .amdhsa_user_sgpr_kernarg_segment_ptr 1\n  .amdhsa_system_sgpr_workgroup_id_x 1\n.end_amdhsa_kernel\n'
    return s


def build(out, **kw):
    cfg = dict(DEFAULT)
    cfg.update(kw)
    s = wrap(gen(cfg), cfg)
    open(out, 'w').write(s)
    return s


if __name__ == '__main__':
    out = sys.argv[1] if len(sys.argv) > 1 else 'cdna_kernels/%s.s' % NAME
    kw = {}
    for arg in sys.argv[2:]:
        k, v = arg.split('=')
        kw[k] = eval(v)
    build(out, **kw)
    print('wrote', out)
```

```python
import sys
from asmlib import Asm

NAME = 'gated_mix__mha_block_cached__dense_activation_gelu__decode'

DEFAULT = dict(
    nt_kv=True,
    nt_w='q12ox',
    gran=4,
    kpre=16,
    nve=4,
    nvk=8,
    nvb=10,
    win=12,
    skip7=True,
    dbgtime=False,
    stop=None,
    stamps=False,
    chk_u=4,
    spin=20000,
)

sXCD, sH, sB, sC, sW, sN = 3, 4, 5, 6, 7, 8
sR, sR1, sLI, sSL, sVAL, sW6 = 9, 10, 11, 12, 13, 14
sT0 = 15
pX, pK, pV, pWQ, pWO, pW1, pB1 = 16, 18, 20, 22, 24, 28, 30
pW2, pB2, pG, pOUT, pDBG, pWS = 32, 34, 36, 38, 40, 42
rK, rV, rWQ, rX, rW1, rW2, rWO, rG, rB1, rB2 = 44, 48, 52, 56, 60, 64, 68, 72, 76, 80
sSELLO, sSELHI = 84, 85
sOFF = 86
sWQO = 93
sT1, sT2 = 94, 95
sKVO = 26
sM1 = 96
sM0 = 98
sSPIN = 100
sSTAMP = 101

vL = 0
vO16 = 1
vWQ = 2
vAO = 3
vAML = 4
vAY = 5
vPO = 6
vPML = 7
vPY = 8
vLQW = 9
vLOW = 10
vLB = 11
vLOR = 12
vT0, vT1, vT2 = 13, 14, 15
vXQ = 16
vACCF = 16
vACC = 32
vQ = 40
vR = 44
vT = 48
vU = 56
RING = 64
XR = 192
vPP = 176
VE = 240
vW1, vW2, vWO = 192, 200, 208
vXG, vGW, vXW1, vB1, vB2, vCHK = 224, 228, 232, 233, 234, 236
vG, vOMG = 237, 238
vSPARE = 239

QBUF, OBUF, OSTR = 0, 8192, 1040
MX, LW, HB, OCB = 16640, 16672, 16704, 17216
LDS_BYTES = 17408

OREG = 0
YREG = 0x80000
YB = 32 * 8192
STREG = 0x200000
CNT = 128

LOG2E = 1.4426950408889634


def f2h(x):
    import struct
    return '0x%08x' % struct.unpack('<I', struct.pack('<f', x))[0]


def slot(t):
    return RING + 4 * t


def vslot(t):
    return VE + 4 * t if t < 4 else RING + 4 * (t - 4)


def vr(a, n):
    return 'v[%d:%d]' % (a, a + n - 1)


def sr(a, n):
    return 's[%d:%d]' % (a, a + n - 1)


def gen(cfg):
    a = Asm()
    NT = ' nt' if cfg['nt_kv'] else ''
    NWQ, NW1, NW2, NWO, NW = [' nt' if ch in cfg['nt_w'] else '' for ch in 'q12ox']
    gran = cfg['gran']

    def kvoff(t):
        return (t // gran) * gran * 8192 + (t % gran) * 1024
    nstamp = [0]
    stamp_ids = {}

    def stamp(name):
        if not cfg['stamps']:
            return
        i = nstamp[0]
        nstamp[0] += 1
        stamp_ids[name] = i
        a.c('stamp %d %s' % (i, name))
        a('s_memrealtime s[100:101]')
        a('s_waitcnt lgkmcnt(0)')
        a('v_writelane_b32 v31, s100, %d' % i)

    def srd(r, base, off_sgpr, nrec):
        if off_sgpr is None:
            a('s_mov_b32 s%d, s%d' % (r, base))
            a('s_mov_b32 s%d, s%d' % (r + 1, base + 1))
        else:
            a('s_add_u32 s%d, s%d, s%d' % (r, base, off_sgpr))
            a('s_addc_u32 s%d, s%d, 0' % (r + 1, base + 1))
        a('s_mov_b32 s%d, %s' % (r + 2, nrec))
        a('s_mov_b32 s%d, 0x00020000' % (r + 3))

    def kv_load(rs, t):
        reg = slot(t) if rs == rK else vslot(t)
        if gran >= 4:
            so = '0' if t < 4 else 's%d' % (sOFF + t // 4 - 1)
            off = (t % 4) * 1024
        else:
            off = 0
            so = '0'
            if t > 0:
                a('s_mov_b32 s%d, %d' % (sKVO, kvoff(t)))
                so = 's%d' % sKVO
        a('buffer_load_dwordx4 %s, v%d, %s, %s offen offset:%d%s' % (vr(reg, 4), vO16, sr(rs, 4), so, off, NT))

    vissued = [0]

    def v_upto(n):
        n = min(n, 32)
        while vissued[0] < n:
            kv_load(rV, vissued[0])
            vissued[0] += 1

    def allred(op, reg, tmp):
        for n in (8, 4, 2, 1):
            a('%s_dpp v%d, v%d, v%d row_ror:%d row_mask:0xf bank_mask:0xf' % (op, reg, reg, reg, n))
        a('v_mov_b32 v%d, v%d' % (tmp, reg))
        a('v_permlane16_swap_b32 v%d, v%d' % (reg, tmp))
        a('%s v%d, v%d, v%d' % (op, reg, reg, tmp))
        a('v_mov_b32 v%d, v%d' % (tmp, reg))
        a('v_permlane32_swap_b32 v%d, v%d' % (reg, tmp))
        a('%s v%d, v%d, v%d' % (op, reg, reg, tmp))

    def rnd_bf16(dst, src):
        a('v_cvt_pk_bf16_f32 v%d, v%d, v%d' % (dst, src, src))
        a('v_and_b32 v%d, 0xffff0000, v%d' % (dst, dst))

    a('s_cmp_ge_u32 s2, 256')
    a('s_cbranch_scc1 L_END')
    a('s_load_dwordx16 s[16:31], s[0:1], 0')
    a('s_load_dwordx8 s[32:39], s[0:1], 64')
    a('s_load_dwordx4 s[40:43], s[0:1], 96')
    if cfg['stamps']:
        a('v_mov_b32 v31, 0')
    a('v_lshrrev_b32 v%d, 6, v0' % vT0)
    a('v_and_b32 v%d, 63, v0' % vL)
    a('v_readfirstlane_b32 s%d, v%d' % (sW, vT0))
    a('s_and_b32 s%d, s2, 7' % sXCD)
    a('s_lshr_b32 s%d, s2, 3' % sR)
    a('s_and_b32 s%d, s%d, 1' % (sR1, sR))
    a('s_lshl_b32 s%d, s%d, 3' % (sLI, sR1))
    a('s_add_u32 s%d, s%d, s%d' % (sH, sLI, sXCD))
    a('s_lshr_b32 s%d, s%d, 1' % (sB, sR))
    a('s_and_b32 s%d, s%d, 1' % (sB, sB))
    a('s_lshr_b32 s%d, s%d, 2' % (sC, sR))
    a('s_lshl_b32 s%d, s%d, 4' % (sN, sC))
    a('s_add_u32 s%d, s%d, s%d' % (sN, sN, sH))
    a('s_add_u32 s%d, s%d, s%d' % (sLI, sLI, sC))
    a('s_mul_i32 s%d, s%d, 14' % (sSL, sXCD))
    a('s_add_u32 s%d, s%d, s%d' % (sSL, sSL, sLI))
    a('s_cmp_lt_u32 s%d, 14' % sLI)
    a('s_cselect_b32 s%d, s%d, 0' % (sSL, sSL))
    a('s_cselect_b32 s%d, -1, 0' % sVAL)
    a('s_min_u32 s%d, s%d, 6' % (sW6, sW))
    a('s_mov_b32 s%d, 0x05040100' % sSELLO)
    a('s_mov_b32 s%d, 0x07060302' % sSELHI)
    if gran >= 4:
        for j in range(1, 8):
            a('s_mov_b32 s%d, %d' % (sOFF + j - 1, kvoff(4 * j)))
    a('v_lshlrev_b32 v%d, 4, v%d' % (vO16, vL))
    a('v_lshrrev_b32 v%d, 5, v%d' % (vT0, vL))
    a('v_and_b32 v%d, 31, v%d' % (vT1, vL))
    a('v_mul_u32_u24 v%d, 0x38000, v%d' % (vWQ, vT0))
    a('v_lshl_add_u32 v%d, v%d, 4, v%d' % (vWQ, vT1, vWQ))
    a('v_lshlrev_b32 v%d, 4, v%d' % (vLB, vT0))
    a('v_lshl_add_u32 v%d, v%d, 5, v%d' % (vLB, vT1, vLB))
    a('v_mul_u32_u24 v%d, 56, v%d' % (vT2, vT0))
    a('s_lshl_b32 s%d, s%d, 4' % (sT0, sB))
    a('s_add_u32 s%d, s%d, s%d' % (sT0, sT0, sH))
    a('s_lshl_b32 s%d, s%d, 21' % (sT1, sT0))
    a('s_lshl_b32 s%d, s%d, 18' % (sT2, sC))
    a('s_add_u32 s%d, s%d, s%d' % (sT1, sT1, sT2))
    a('s_mul_i32 s%d, s%d, %d' % (sT2, sW, gran * 1024))
    a('s_add_u32 s%d, s%d, s%d' % (sT1, sT1, sT2))
    stamp('entry')
    a('s_waitcnt lgkmcnt(0)')
    stamp('kernarg')
    a('s_mul_i32 s%d, s%d, 896' % (sT2, sB))
    srd(rX, pX, sT2, '896')
    srd(rK, pK, sT1, str(kvoff(31) + 1024))
    srd(rV, pV, sT1, str(kvoff(31) + 1024))
    a('s_mul_i32 s%d, s%d, 112' % (sT2, sW))
    for k in range(3):
        a('buffer_load_dwordx4 %s, v%d, %s, s%d offen offset:%d%s' % (vr(vXQ + 4 * k, 4), vT2, sr(rX, 4), sT2, 16 * k, NW))
    a('buffer_load_dwordx2 %s, v%d, %s, s%d offen offset:48%s' % (vr(vXQ + 12, 2), vT2, sr(rX, 4), sT2, NW))
    a.c('sentinel clears (wave 0)')
    a('s_cmp_lg_u32 s%d, 0' % sW)
    a('s_cbranch_scc1 L_NOCLR')
    for k in range(4):
        a('v_mov_b32 v%d, -1' % (vR + k))
    a('s_lshl_b32 s%d, s%d, 14' % (sT1, sT0))
    a('s_lshl_b32 s%d, s%d, 7' % (sT2, sC))
    a('s_add_u32 s%d, s%d, s%d' % (sT2, sT2, sT1))
    a('v_lshrrev_b32 v48, 3, v%d' % vL)
    a('v_and_b32 v49, 7, v%d' % vL)
    a('v_lshlrev_b32 v48, 11, v48')
    a('v_lshl_add_u32 v48, v49, 4, v48')
    a('v_add_u32 v48, s%d, v48' % sT2)
    a('global_store_dwordx4 v48, %s, %s sc1' % (vr(vR, 4), sr(pWS, 2)), tag='clr', optional=True)
    a('s_lshl_b32 s%d, s%d, 3' % (sT2, sC))
    a('s_add_u32 s%d, s%d, s%d' % (sT2, sT2, sT1))
    a('s_add_u32 s%d, s%d, 1024' % (sT2, sT2))
    a('v_lshl_add_u32 v50, v%d, 11, s%d' % (vL, sT2))
    a('s_mov_b64 exec, 0xff')
    a('global_store_dwordx2 v50, %s, %s sc1' % (vr(vR, 2), sr(pWS, 2)), tag='clr', optional=True)
    a('s_mov_b64 exec, -1')
    a('s_mul_i32 s%d, s%d, %d' % (sT1, sB, YB))
    a('s_lshl_b32 s%d, s%d, 6' % (sT2, sN))
    a('s_add_u32 s%d, s%d, s%d' % (sT1, sT1, sT2))
    a('s_add_u32 s%d, s%d, %d' % (sT1, sT1, YREG))
    a('v_lshrrev_b32 v51, 2, v%d' % vL)
    a('v_and_b32 v52, 3, v%d' % vL)
    a('v_lshlrev_b32 v51, 13, v51')
    a('v_lshl_add_u32 v51, v52, 4, v51')
    a('v_add_u32 v51, s%d, v51' % sT1)
    a('v_add_u32 v52, 0x20000, v51')
    a('global_store_dwordx4 v51, %s, %s sc1' % (vr(vR, 4), sr(pWS, 2)), tag='clr', optional=True)
    a('s_mov_b32 exec_hi, 0xffff')
    a('global_store_dwordx4 v52, %s, %s sc1' % (vr(vR, 4), sr(pWS, 2)), tag='clr', optional=True)
    a('s_mov_b64 exec, -1')
    a.label('L_NOCLR')
    a('s_mul_i32 s%d, s%d, %d' % (sT1, sW, 56 * 8192))
    a('s_lshl_b32 s%d, s%d, 9' % (sT2, sH))
    a('s_add_u32 s%d, s%d, s%d' % (sT1, sT1, sT2))
    srd(rWQ, pWQ, sT1, '451072')

    def wq_regs(u):
        if u < 8:
            return slot(16 + 2 * u), slot(17 + 2 * u)
        return XR + 8 * (u - 8), XR + 8 * (u - 8) + 4

    kpre = cfg['kpre']
    kq = list(range(kpre))
    for u in range(14):
        if kq:
            kv_load(rK, kq.pop(0))
        A, B = wq_regs(u)
        for j, r in enumerate((A, B)):
            row = 2 * u + j
            if row == 0:
                a('buffer_load_dwordx4 %s, v%d, %s, 0 offen%s' % (vr(r, 4), vWQ, sr(rWQ, 4), NWQ))
            else:
                a('s_mov_b32 s%d, %d' % (sWQO, row * 8192))
                a('buffer_load_dwordx4 %s, v%d, %s, s%d offen%s' % (vr(r, 4), vWQ, sr(rWQ, 4), sWQO, NWQ))
    while kq:
        kv_load(rK, kq.pop(0))
    stamp('prologue issued')

    a.c('hand-off addresses')
    a('s_lshl_b32 s%d, s%d, 3' % (sT1, sT0))
    a('s_add_u32 s%d, s%d, s%d' % (sT2, sT1, sW))
    a('s_lshl_b32 s%d, s%d, 11' % (sT2, sT2))
    a('s_lshl_b32 s%d, s%d, 7' % (sWQO, sC))
    a('s_add_u32 s%d, s%d, s%d' % (sWQO, sWQO, sT2))
    a('v_lshrrev_b32 v%d, 3, v%d' % (vT0, vL))
    a('v_and_b32 v%d, 7, v%d' % (vT1, vL))
    a('v_lshl_add_u32 v%d, v%d, 4, s%d' % (vAO, vT0, sWQO))
    a('s_lshl_b32 s%d, s%d, 3' % (sWQO, sC))
    a('s_add_u32 s%d, s%d, s%d' % (sWQO, sWQO, sT2))
    a('s_add_u32 s%d, s%d, 1024' % (sWQO, sWQO))
    a('v_mov_b32 v%d, s%d' % (vAML, sWQO))
    a('s_add_u32 s%d, s%d, s%d' % (sT2, sT1, sC))
    a('s_lshl_b32 s%d, s%d, 11' % (sT2, sT2))
    a('v_lshlrev_b32 v%d, 7, v%d' % (vPO, vT1))
    a('v_lshl_add_u32 v%d, v%d, 4, v%d' % (vPO, vT0, vPO))
    a('v_add_u32 v%d, s%d, v%d' % (vPO, sT2, vPO))
    a('s_add_u32 s%d, s%d, 1024' % (sT2, sT2))
    a('v_lshl_add_u32 v%d, v%d, 3, s%d' % (vPML, vT1, sT2))
    a('s_mul_i32 s%d, s%d, %d' % (sT1, sB, YB))
    a('s_add_u32 s%d, s%d, %d' % (sT1, sT1, YREG))
    a('s_lshl_b32 s%d, s%d, 15' % (sT2, sW))
    a('s_add_u32 s%d, s%d, s%d' % (sT2, sT2, sT1))
    a('s_lshl_b32 s%d, s%d, 6' % (sWQO, sN))
    a('s_add_u32 s%d, s%d, s%d' % (sT2, sT2, sWQO))
    a('v_lshrrev_b32 v%d, 1, v%d' % (vT2, vT1))
    a('v_lshlrev_b32 v%d, 13, v%d' % (vAY, vT2))
    a('v_and_b32 v%d, 1, v%d' % (vT2, vL))
    a('v_lshl_add_u32 v%d, v%d, 5, v%d' % (vAY, vT2, vAY))
    a('v_lshrrev_b32 v%d, 5, v%d' % (vT2, vL))
    a('v_lshl_add_u32 v%d, v%d, 4, v%d' % (vAY, vT2, vAY))
    a('v_bfe_u32 v%d, v%d, 4, 1' % (vT2, vL))
    a('v_lshl_add_u32 v%d, v%d, 3, v%d' % (vAY, vT2, vAY))
    a('v_add_u32 v%d, s%d, v%d' % (vAY, sT2, vAY))
    a('s_min_u32 s%d, s%d, 27' % (sT2, sN))
    a('s_lshl_b32 s%d, s%d, 13' % (sT2, sT2))
    a('s_add_u32 s%d, s%d, s%d' % (sT2, sT2, sT1))
    a('v_and_b32 v%d, 15, v%d' % (vT2, vL))
    a('v_lshlrev_b32 v%d, 6, v%d' % (vPY, vT2))
    a('v_lshrrev_b32 v%d, 4, v%d' % (vT2, vL))
    a('v_lshl_add_u32 v%d, v%d, 4, v%d' % (vPY, vT2, vPY))
    a('v_add_u32 v%d, s%d, v%d' % (vPY, sT2, vPY))
    a('s_lshl_b32 s%d, s%d, 10' % (sT1, sW))
    a('v_add_u32 v%d, s%d, v%d' % (vLQW, sT1, vLB))
    a('s_mul_i32 s%d, s%d, %d' % (sT1, sW, OSTR))
    a('s_add_u32 s%d, s%d, %d' % (sT1, sT1, OBUF))
    a('v_add_u32 v%d, s%d, v%d' % (vLOW, sT1, vLB))
    a('v_mul_u32_u24 v%d, %d, v%d' % (vLOR, OSTR, vT1))
    a('v_lshl_add_u32 v%d, v%d, 4, v%d' % (vLOR, vT0, vLOR))
    a('s_lshl_b32 s%d, s%d, 7' % (sT1, sW))
    a('s_add_u32 s%d, s%d, %d' % (sT1, sT1, OBUF))
    a('v_add_u32 v%d, s%d, v%d' % (vLOR, sT1, vLOR))
    a('s_mov_b32 s%d, 0xcccccccc' % sM1)
    a('s_mov_b32 s%d, 0xcccccccc' % (sM1 + 1))
    a('s_mov_b32 s%d, 0xaaaaaaaa' % sM0)
    a('s_mov_b32 s%d, 0xaaaaaaaa' % (sM0 + 1))

    a.c('q phase')
    knext = kpre
    for u in range(14):
        A, B = wq_regs(u)
        for k in range(4):
            a('v_perm_b32 v%d, v%d, v%d, s%d' % (vT + 2 * k, B + k, A + k, sSELLO))
            a('v_perm_b32 v%d, v%d, v%d, s%d' % (vT + 2 * k + 1, B + k, A + k, sSELHI))
        if u == 0:
            stamp('first wq pair')
            a.save('flag')
            a('s_cmp_lg_u32 s%d, 0' % sW)
            a('s_cbranch_scc1 L_NOFLAG')
            a('s_lshl_b32 s%d, s%d, 2' % (sT1, sT0))
            a('s_add_u32 s%d, s%d, %d' % (sT1, sT1, CNT))
            a('v_mov_b32 v%d, s%d' % (vT0, sT1))
            a('v_mov_b32 v%d, 1' % vT1)
            a.wait_tag('clr')
            a('s_mov_b64 exec, 1')
            a('global_atomic_add v%d, v%d, %s' % (vT0, vT1, sr(pDBG, 2)), optional=True)
            a('s_mov_b64 exec, -1')
            a.label('L_NOFLAG')
            a.restore('flag')
        lim = 16 + 2 * u + 2 if u < 8 else 32
        while knext < min(lim, 32) and (knext < 16 or u >= (knext - 16) // 2):
            kv_load(rK, knext)
            knext += 1
        for j in range(8):
            c = '0' if u == 0 else 'v%d' % (vACC + j)
            a('v_dot2_f32_bf16 v%d, v%d, v%d, %s' % (vACC + j, vT + j, vXQ + u, c))
    assert knext == 32
    stamp('q dots done')
    for j in range(4):
        a('v_permlane32_swap_b32 v%d, v%d' % (vACC + j, vACC + j + 4))
    for j in range(4):
        a('v_add_f32 v%d, v%d, v%d' % (vR + j, vACC + j, vACC + j + 4))
    a('ds_write_b128 v%d, %s' % (vLQW, vr(vR, 4)))
    v_upto(cfg['nve'])
    a('s_waitcnt lgkmcnt(0)')
    a('s_barrier')
    stamp('B1')
    for k in range(8):
        a('ds_read_b128 %s, v%d offset:%d' % (vr(XR + 4 * k, 4), vLB, QBUF + k * 1024))
    for k in range(1, 8):
        for j in range(4):
            a('v_add_f32 v%d, v%d, v%d' % (XR + j, XR + j, XR + 4 * k + j))
    a('v_cvt_pk_bf16_f32 v%d, v%d, v%d' % (vQ, XR, XR + 1))
    a('v_cvt_pk_bf16_f32 v%d, v%d, v%d' % (vQ + 1, XR + 2, XR + 3))
    a('v_mov_b32 v%d, v%d' % (vQ + 2, vQ))
    a('v_mov_b32 v%d, v%d' % (vQ + 3, vQ + 1))
    a('v_permlane32_swap_b32 v%d, v%d' % (vQ, vQ + 2))
    a('v_permlane32_swap_b32 v%d, v%d' % (vQ + 1, vQ + 3))
    stamp('q ready')

    def small_loads():
        a.c('w1 / w2 / wo / gate / bias loads')
        a('s_mul_i32 s%d, s%d, %d' % (sT1, sW6, 64 * 3584))
        a('s_lshl_b32 s%d, s%d, 5' % (sT2, sSL))
        a('s_add_u32 s%d, s%d, s%d' % (sT1, sT1, sT2))
        if cfg['skip7']:
            a('s_cmp_eq_u32 s%d, 7' % sW)
            a('s_cselect_b32 s%d, 0, s%d' % (sKVO + 1, sVAL))
        else:
            a('s_mov_b32 s%d, s%d' % (sKVO + 1, sVAL))
        a('s_and_b32 s%d, s%d, %d' % (sWQO, sKVO + 1, 63 * 3584 + 32))
        srd(rW1, pW1, sT1, 's%d' % sWQO)
        a('s_and_b32 s%d, s%d, 32' % (sWQO, sVAL))
        srd(rB1, pB1, sT2, 's%d' % sWQO)
        a('s_mul_i32 s%d, s%d, %d' % (sT1, sSL, 16 * 896))
        a('s_lshl_b32 s%d, s%d, 7' % (sT2, sW6))
        a('s_add_u32 s%d, s%d, s%d' % (sT1, sT1, sT2))
        a('s_and_b32 s%d, s%d, %d' % (sWQO, sKVO + 1, 15 * 896 + 128))
        srd(rW2, pW2, sT1, 's%d' % sWQO)
        a('s_lshl_b32 s%d, s%d, 8' % (sT1, sH))
        a('s_lshl_b32 s%d, s%d, 5' % (sWQO, sC))
        a('s_add_u32 s%d, s%d, s%d' % (sT1, sT1, sWQO))
        a('s_mul_i32 s%d, s%d, 896' % (sT1, sT1))
        a('s_add_u32 s%d, s%d, s%d' % (sT1, sT1, sT2))
        if cfg['skip7']:
            a('s_cmp_eq_u32 s%d, 7' % sW)
            a('s_cselect_b32 s%d, 0, %d' % (sWQO, 31 * 896 + 128))
            srd(rWO, pWO, sT1, 's%d' % sWQO)
        else:
            srd(rWO, pWO, sT1, str(31 * 896 + 128))
        srd(rG, pG, None, '896')
        srd(rB2, pB2, None, '896')
        a('v_and_b32 v%d, 31, v%d' % (vT0, vL))
        a('v_mul_u32_u24 v%d, 7168, v%d' % (vT1, vT0))
        a('v_lshrrev_b32 v%d, 5, v%d' % (vT2, vL))
        a('v_lshl_add_u32 v%d, v%d, 4, v%d' % (vT1, vT2, vT1))
        a('buffer_load_dwordx4 %s, v%d, %s, 0 offen%s' % (vr(vW1, 4), vT1, sr(rW1, 4), NW1))
        a('buffer_load_dwordx4 %s, v%d, %s, 0 offen offset:3584%s' % (vr(vW1 + 4, 4), vT1, sr(rW1, 4), NW1))
        a('v_lshlrev_b32 v%d, 2, v%d' % (vT0, vT0))
        a('buffer_load_dword v%d, v%d, %s, s%d offen%s' % (vXW1, vT0, sr(rX, 4), sT2, NW))
        a('buffer_load_dwordx4 %s, v%d, %s, 0 offen%s' % (vr(vXG, 4), vO16, sr(rX, 4), NW))
        a('buffer_load_dwordx4 %s, v%d, %s, 0 offen%s' % (vr(vGW, 4), vO16, sr(rG, 4), NW))
        a('v_lshrrev_b32 v%d, 3, v%d' % (vT0, vL))
        a('v_and_b32 v%d, 7, v%d' % (vT1, vL))
        a('v_lshlrev_b32 v%d, 4, v%d' % (vT1, vT1))
        a('v_lshlrev_b32 v%d, 2, v%d' % (vT2, vT0))
        a('buffer_load_dword v%d, v%d, %s, 0 offen%s' % (vB1, vT2, sr(rB1, 4), NW))
        a('v_mul_u32_u24 v%d, 1792, v%d' % (vT2, vT0))
        a('v_add_u32 v%d, v%d, v%d' % (vT2, vT2, vT1))
        a('buffer_load_dwordx4 %s, v%d, %s, 0 offen%s' % (vr(vW2, 4), vT2, sr(rW2, 4), NW2))
        a('buffer_load_dwordx4 %s, v%d, %s, 0 offen offset:896%s' % (vr(vW2 + 4, 4), vT2, sr(rW2, 4), NW2))
        a('v_mul_u32_u24 v%d, 3584, v%d' % (vT2, vT0))
        a('v_add_u32 v%d, v%d, v%d' % (vT2, vT2, vT1))
        for k in range(4):
            a('buffer_load_dwordx4 %s, v%d, %s, 0 offen offset:%d%s' % (vr(vWO + 4 * k, 4), vT2, sr(rWO, 4), 896 * k, NWO))
        a('s_min_u32 s%d, s%d, 27' % (sT1, sN))
        a('s_lshl_b32 s%d, s%d, 5' % (sT1, sT1))
        a('v_lshrrev_b32 v%d, 4, v%d' % (vT0, vL))
        a('v_lshlrev_b32 v%d, 3, v%d' % (vT0, vT0))
        a('buffer_load_dwordx2 %s, v%d, %s, s%d offen%s' % (vr(vB2, 2), vT0, sr(rB2, 4), sT1, NW))

    small_loads()

    a.c('K phase')
    pool = [24, 25, 26, 27, 28, 29, 30, 56, 57, 58, 59, 60, 61, 62, 63, 48, 49, 50, 51, 52, 53, 54, 55]
    if not cfg['stamps']:
        pool.append(31)
    levels = {1: [], 2: [], 3: [], 4: [], 5: []}

    def merge(level, x, y):
        if level == 1:
            d = pool.pop(0)
            a('v_add_f32_dpp v%d, v%d, v%d row_ror:8 row_mask:0xf bank_mask:0x3' % (d, x, x))
            a('v_add_f32_dpp v%d, v%d, v%d row_ror:8 row_mask:0xf bank_mask:0xc' % (d, y, y))
            pool.extend([x, y])
            return d
        if level == 2:
            d = pool.pop(0)
            a('v_add_f32_dpp v%d, v%d, v%d row_shl:4 row_mask:0xf bank_mask:0x5' % (d, x, x))
            a('v_add_f32_dpp v%d, v%d, v%d row_shr:4 row_mask:0xf bank_mask:0xa' % (d, y, y))
            pool.extend([x, y])
            return d
        qp = '[2,3,0,1]' if level == 3 else '[1,0,3,2]'
        msk = sM1 if level == 3 else sM0
        a('v_add_f32_dpp v%d, v%d, v%d quad_perm:%s row_mask:0xf bank_mask:0xf' % (x, x, x, qp))
        a('v_add_f32_dpp v%d, v%d, v%d quad_perm:%s row_mask:0xf bank_mask:0xf' % (y, y, y, qp))
        a('v_cndmask_b32_e64 v%d, v%d, v%d, %s' % (x, x, y, sr(msk, 2)))
        pool.append(y)
        return x

    def tree_step(gap, flush=False):
        for level in (4, 3, 2, 1):
            L = levels[level]
            while len(L) >= 2 and (flush or (L[0][1] < gap and L[1][1] < gap)):
                x = L.pop(0)[0]
                y = L.pop(0)[0]
                levels[level + 1].append((merge(level, x, y), gap))
                if not flush:
                    break

    for j in range(16):
        t0, t1 = 2 * j, 2 * j + 1
        x = pool.pop(0)
        y = pool.pop(0)
        for k in range(4):
            a('v_dot2_f32_bf16 v%d, v%d, v%d, %s' % (x, slot(t0) + k, vQ + k, '0' if k == 0 else 'v%d' % x))
            a('v_dot2_f32_bf16 v%d, v%d, v%d, %s' % (y, slot(t1) + k, vQ + k, '0' if k == 0 else 'v%d' % y))
        v_upto(min(cfg['nve'] + ((cfg['nvk'] - cfg['nve']) * (j + 1) + 15) // 16, 2 * j + 6))
        tree_step(j)
        a('v_permlane16_swap_b32 v%d, v%d' % (x, y))
        a('v_add_f32 v%d, v%d, v%d' % (x, x, y))
        pool.append(y)
        levels[1].append((x, j))
        if j in (0, 7):
            stamp('K pair %d' % j)
    for g in range(16, 24):
        tree_step(g)
    assert len(levels[5]) == 1 and not any(levels[l] for l in (1, 2, 3, 4)), levels
    vS = levels[5][0][0]
    stamp('K done')
    vM = 54
    vE, vTM = 28, 29

    rnd_bf16(30, vS)
    vS = 30
    a('v_mov_b32 v%d, v%d' % (vE, vS))
    allred('v_max_f32', vE, vTM)
    a('s_lshl_b32 s%d, s%d, 2' % (sT1, sW))
    a('s_add_u32 s%d, s%d, %d' % (sT1, sT1, MX))
    a('v_mov_b32 v%d, s%d' % (vT0, sT1))
    a('ds_write_b32 v%d, v%d' % (vT0, vE))

    a.c('h partial')
    for k in range(4):
        a('v_perm_b32 v%d, v%d, v%d, s%d' % (vU + 2 * k, vW1 + 4 + k, vW1 + k, sSELLO))
        a('v_perm_b32 v%d, v%d, v%d, s%d' % (vU + 2 * k + 1, vW1 + 4 + k, vW1 + k, sSELHI))
    for j in range(8):
        a('v_dot2_f32_bf16 v%d, v%d, v%d, 0' % (vW1 + j, vU + j, vXW1))
    for j in range(4):
        a('v_permlane16_swap_b32 v%d, v%d' % (vW1 + j, vW1 + j + 4))
    for j in range(4):
        a('v_add_f32 v%d, v%d, v%d' % (vW1 + j, vW1 + j, vW1 + j + 4))
    for j in range(2):
        a('v_add_f32_dpp v%d, v%d, v%d row_ror:8 row_mask:0xf bank_mask:0x3' % (vW1 + 4 + j, vW1 + j, vW1 + j))
        a('v_add_f32_dpp v%d, v%d, v%d row_ror:8 row_mask:0xf bank_mask:0xc' % (vW1 + 4 + j, vW1 + 2 + j, vW1 + 2 + j))
    a('v_add_f32_dpp v%d, v%d, v%d row_shl:4 row_mask:0xf bank_mask:0x5' % (vW1, vW1 + 4, vW1 + 4))
    a('v_add_f32_dpp v%d, v%d, v%d row_shr:4 row_mask:0xf bank_mask:0xa' % (vW1, vW1 + 5, vW1 + 5))
    a('v_add_f32_dpp v%d, v%d, v%d quad_perm:[2,3,0,1] row_mask:0xf bank_mask:0xf' % (vW1, vW1, vW1))
    a('v_add_f32_dpp v%d, v%d, v%d quad_perm:[1,0,3,2] row_mask:0xf bank_mask:0xf' % (vW1, vW1, vW1))
    a('s_lshl_b32 s%d, s%d, 6' % (sT1, sW))
    a('s_add_u32 s%d, s%d, %d' % (sT1, sT1, HB))
    a('v_and_b32 v%d, 0x3c, v%d' % (vT1, vL))
    a('v_add_u32 v%d, s%d, v%d' % (vT1, sT1, vT1))
    a('ds_write_b32 v%d, v%d' % (vT1, vW1))
    v_upto(cfg['nvb'])
    a('s_waitcnt lgkmcnt(0)')
    a('s_barrier')
    stamp('B2')

    a('v_mov_b32 v%d, %d' % (vT0, MX))
    a('ds_read_b128 %s, v%d' % (vr(vU, 4), vT0))
    a('ds_read_b128 %s, v%d offset:16' % (vr(vU + 4, 4), vT0))
    a('v_max3_f32 v%d, v%d, v%d, v%d' % (vM, vU, vU + 1, vU + 2))
    a('v_max3_f32 v%d, v%d, v%d, v%d' % (vM, vM, vU + 3, vU + 4))
    a('v_max3_f32 v%d, v%d, v%d, v%d' % (vM, vM, vU + 5, vU + 6))
    a('v_max_f32 v%d, v%d, v%d' % (vM, vM, vU + 7))
    CS = f2h(LOG2E / 16.0)
    a('v_sub_f32 v%d, v%d, v%d' % (vE, vS, vM))
    a('v_mul_f32 v%d, %s, v%d' % (vE, CS, vE))
    a('v_exp_f32 v%d, v%d' % (vE, vE))
    a('v_mov_b32 v%d, v%d' % (vS, vE))
    a('v_mov_b32 v%d, v%d' % (vTM, vE))
    a('v_permlane16_swap_b32 v%d, v%d' % (vS, vTM))
    a('v_cvt_pk_bf16_f32 v%d, v%d, v%d' % (vS, vS, vTM))

    def rev4(x):
        return ((x & 1) << 3) | ((x & 2) << 1) | ((x & 4) >> 1) | ((x & 8) >> 3)
    for u in range(16):
        a('ds_swizzle_b32 v%d, v%d offset:%d' % (vPP + u, vS, rev4(u) << 5))
    allred('v_add_f32', vE, vTM)
    a('s_lshl_b32 s%d, s%d, 2' % (sT1, sW))
    a('s_add_u32 s%d, s%d, %d' % (sT1, sT1, LW))
    a('v_mov_b32 v%d, s%d' % (vT0, sT1))
    a('ds_write_b32 v%d, v%d' % (vT0, vE))
    stamp('softmax done')

    vHP = vXW1
    vB2F = 24
    WP = [[None] * 8, [None] * 8]

    def do_gate():
        a.c('gate')
        ta, tb, tc, td = vU, vU + 1, vU + 2, vU + 3
        vZ = vU + 4
        a('s_mov_b32 s%d, 0x3f803f80' % sT2)
        for k in range(4):
            a('v_lshlrev_b32 v%d, 16, v%d' % (ta, vXG + k))
            a('v_lshlrev_b32 v%d, 16, v%d' % (tb, vGW + k))
            a('v_and_b32 v%d, 0xffff0000, v%d' % (tc, vXG + k))
            a('v_and_b32 v%d, 0xffff0000, v%d' % (td, vGW + k))
            a('v_mul_f32 v%d, v%d, v%d' % (ta, ta, tb))
            a('v_mul_f32 v%d, v%d, v%d' % (tc, tc, td))
            a('v_cvt_pk_bf16_f32 v%d, v%d, v%d' % (ta, ta, tc))
            a('v_dot2_f32_bf16 v%d, v%d, s%d, %s' % (vZ, ta, sT2, '0' if k == 0 else 'v%d' % vZ))
        allred('v_add_f32', vZ, ta)
        rnd_bf16(vZ, vZ)
        a('v_mul_f32 v%d, %s, v%d' % (vZ, f2h(-LOG2E), vZ))
        a('v_exp_f32 v%d, v%d' % (vZ, vZ))
        a('v_add_f32 v%d, 1.0, v%d' % (vZ, vZ))
        a('v_rcp_f32 v%d, v%d' % (vZ, vZ))
        rnd_bf16(vG, vZ)
        a('v_sub_f32 v%d, 1.0, v%d' % (vOMG, vG))
        rnd_bf16(vOMG, vOMG)

    def do_ffn1():
        a.c('ffn second layer partial')
        a('v_lshrrev_b32 v%d, 3, v%d' % (vT0, vL))
        a('v_lshlrev_b32 v%d, 3, v%d' % (vT0, vT0))
        hb = vW1
        regs = [vXG, vXG + 2, vXG + 4, vXG + 6, vW1, vW1 + 2, vW1 + 4]
        for k in range(7):
            a('ds_read_b64 %s, v%d offset:%d' % (vr(regs[k], 2), vT0, HB + 64 * k))
        for k in range(1, 7):
            for j in range(2):
                a('v_add_f32 v%d, v%d, v%d' % (regs[0] + j, regs[0] + j, regs[k] + j))
        h0, h1 = regs[0], regs[0] + 1
        t0_, t1_ = vU, vU + 1
        a('v_cvt_pk_bf16_f32 v%d, v%d, v%d' % (t0_, h0, h1))
        a('v_lshlrev_b32 v%d, 16, v%d' % (h0, t0_))
        a('v_and_b32 v%d, 0xffff0000, v%d' % (h1, t0_))
        a('v_lshlrev_b32 v%d, 16, v%d' % (t0_, vB1))
        a('v_and_b32 v%d, 0xffff0000, v%d' % (t1_, vB1))
        a('v_add_f32 v%d, v%d, v%d' % (h0, h0, t0_))
        a('v_add_f32 v%d, v%d, v%d' % (h1, h1, t1_))
        a('v_cvt_pk_bf16_f32 v%d, v%d, v%d' % (t0_, h0, h1))
        a('v_lshlrev_b32 v%d, 16, v%d' % (h0, t0_))
        a('v_and_b32 v%d, 0xffff0000, v%d' % (h1, t0_))
        C1 = -2.0 * LOG2E * 0.7978845608028654
        C2 = C1 * 0.044715
        a('s_mov_b32 s%d, %s' % (sT1, f2h(C2)))
        a('s_mov_b32 s%d, %s' % (sT2, f2h(C1)))
        for hh, tt in ((h0, t0_), (h1, t1_)):
            a('v_mul_f32 v%d, v%d, v%d' % (tt, hh, hh))
        for hh, tt in ((h0, t0_), (h1, t1_)):
            a('v_mul_f32 v%d, s%d, v%d' % (tt, sT1, tt))
        for hh, tt in ((h0, t0_), (h1, t1_)):
            a('v_add_f32 v%d, s%d, v%d' % (tt, sT2, tt))
        for hh, tt in ((h0, t0_), (h1, t1_)):
            a('v_mul_f32 v%d, v%d, v%d' % (tt, tt, hh))
        for hh, tt in ((h0, t0_), (h1, t1_)):
            a('v_exp_f32 v%d, v%d' % (tt, tt))
        for hh, tt in ((h0, t0_), (h1, t1_)):
            a('v_add_f32 v%d, 1.0, v%d' % (tt, tt))
        for hh, tt in ((h0, t0_), (h1, t1_)):
            a('v_rcp_f32 v%d, v%d' % (tt, tt))
        for hh, tt in ((h0, t0_), (h1, t1_)):
            a('v_mul_f32 v%d, v%d, v%d' % (hh, hh, tt))
        a('v_cvt_pk_bf16_f32 v%d, v%d, v%d' % (vHP, h0, h1))

    def do_ffn2():
        for k in range(4):
            a('v_perm_b32 v%d, v%d, v%d, s%d' % (vU + 2 * k, vW2 + 4 + k, vW2 + k, sSELLO))
            a('v_perm_b32 v%d, v%d, v%d, s%d' % (vU + 2 * k + 1, vW2 + 4 + k, vW2 + k, sSELHI))
        for j in range(8):
            a('v_dot2_f32_bf16 v%d, v%d, v%d, 0' % (vACCF + j, vU + j, vHP))
        a('s_nop 1')
        for j in range(8):
            a('v_mul_f32 v%d, v%d, v%d' % (vACCF + j, vACCF + j, vOMG))
        a('v_lshlrev_b32 v%d, 16, v%d' % (vB2F, vB2))
        a('v_and_b32 v%d, 0xffff0000, v%d' % (vB2F + 1, vB2))
        a('v_lshlrev_b32 v%d, 16, v%d' % (vB2F + 2, vB2 + 1))
        a('v_and_b32 v%d, 0xffff0000, v%d' % (vB2F + 3, vB2 + 1))
        for j in range(4):
            a('v_mul_f32 v%d, v%d, v%d' % (vB2F + j, vB2F + j, vOMG))

    def do_wop():
        a.c('wo pre-permute')
        spare = vW2
        for p in range(2):
            A, B = vWO + 8 * p, vWO + 8 * p + 4
            for k in range(4):
                a('v_perm_b32 v%d, v%d, v%d, s%d' % (spare, B + k, A + k, sSELLO))
                a('v_perm_b32 v%d, v%d, v%d, s%d' % (B + k, B + k, A + k, sSELHI))
                WP[p][2 * k] = spare
                WP[p][2 * k + 1] = B + k
                spare = A + k


    a.c('V phase')
    side = {0: do_gate, 1: do_ffn1, 2: do_ffn2, 3: do_wop}
    for u in range(16):
        v_upto(2 * u + cfg['win'])
        A, B = vslot(2 * u), vslot(2 * u + 1)
        for k in range(4):
            a('v_perm_b32 v%d, v%d, v%d, s%d' % (vU + 2 * k, B + k, A + k, sSELLO))
            a('v_perm_b32 v%d, v%d, v%d, s%d' % (vU + 2 * k + 1, B + k, A + k, sSELHI))
        for j in range(8):
            c = '0' if u == 0 else 'v%d' % (vACC + j)
            a('v_dot2_f32_bf16 v%d, v%d, v%d, %s' % (vACC + j, vU + j, vPP + u, c))
        if u in side:
            side[u]()
        if u == cfg['chk_u']:
            a('s_cmp_lg_u32 s%d, 7' % sW)
            a('s_cbranch_scc1 L_NOCHK')
            a('v_and_b32 v%d, 15, v%d' % (vT0, vL))
            a('s_lshl_b32 s%d, s%d, 4' % (sT1, sB))
            a('s_add_u32 s%d, s%d, %d' % (sT1, sT1, CNT // 4))
            a('v_add_u32 v%d, s%d, v%d' % (vT0, sT1, vT0))
            a('v_lshlrev_b32 v%d, 2, v%d' % (vSPARE, vT0))
            a('global_load_dword v%d, v%d, %s sc1' % (vCHK, vSPARE, sr(pDBG, 2)), optional=True)
            a.label('L_NOCHK')
        if u in (0, 7):
            stamp('V pair %d' % u)
    stamp('V done')
    for j in range(4):
        a('v_permlane32_swap_b32 v%d, v%d' % (vACC + j, vACC + j + 4))
    for j in range(4):
        a('v_add_f32 v%d, v%d, v%d' % (vR + j, vACC + j, vACC + j + 4))
    a('ds_write_b128 v%d, %s' % (vLOW, vr(vR, 4)))
    a('v_and_b32 v%d, 7, v%d' % (vT0, vL))
    a('v_lshlrev_b32 v%d, 2, v%d' % (vT0, vT0))
    a('s_waitcnt lgkmcnt(0)')
    a('s_barrier')
    stamp('B3')
    vO = 48
    a('ds_read_b128 %s, v%d' % (vr(vO, 4), vLOR))
    a('ds_read_b32 v%d, v%d offset:%d' % (vM + 1, vT0, LW))
    five = [vO, vO + 1, vO + 2, vO + 3, vM + 1]
    for ctl in ('quad_perm:[1,0,3,2]', 'quad_perm:[2,3,0,1]', 'row_half_mirror'):
        for r in five:
            a('v_add_f32_dpp v%d, v%d, v%d %s row_mask:0xf bank_mask:0xf' % (r, r, r, ctl))
    a('s_mov_b32 exec_lo, 0x01010101')
    a('s_mov_b32 exec_hi, 0x01010101')
    a('global_store_dwordx4 v%d, %s, %s sc1' % (vAO, vr(vO, 4), sr(pWS, 2)))
    a('s_mov_b64 exec, 1')
    a('global_store_dwordx2 v%d, %s, %s sc1' % (vAML, vr(vM, 2), sr(pWS, 2)))
    a('s_mov_b64 exec, -1')
    stamp('o published')
    if cfg['stop'] == 'pub':
        a('s_branch L_FIN')
    a('s_cmp_lg_u32 s%d, 7' % sW)
    a.save('w7')
    a('s_cbranch_scc1 L_YPART')
    a('v_cmp_ne_u32 vcc, 8, v%d' % vCHK)
    a.save('chk')
    a('s_cbranch_vccnz L_CHK_SLOW')
    a.label('L_CHK_OK')

    a.c('hop 1')
    a('s_mov_b32 s%d, %d' % (sSPIN, cfg['spin']))
    vPo, vPm = 64, 68
    a.label('L_POLL1')
    a('global_load_dwordx4 %s, v%d, %s sc1' % (vr(vPo, 4), vPO, sr(pWS, 2)))
    a('global_load_dwordx2 %s, v%d, %s sc1' % (vr(vPm, 2), vPML, sr(pWS, 2)))
    a('s_sub_u32 s%d, s%d, 1' % (sSPIN, sSPIN))
    a('s_cmp_eq_u32 s%d, 0' % sSPIN)
    a('s_waitcnt vmcnt(0)')
    a('s_cbranch_scc1 L_POLL1_DONE')
    a('v_max3_u32 v70, v64, v65, v66')
    a('v_max3_u32 v71, v67, v68, v69')
    a('v_max_u32 v70, v70, v71')
    a('v_cmp_eq_u32 vcc, -1, v70')
    a('s_cbranch_vccnz L_POLL1')
    a.label('L_POLL1_DONE')
    a('s_nop 0')
    stamp('hop1 data')
    m, l, Mx, w_, L_ = 68, 69, 70, 71, 72
    a('v_max_f32_dpp v%d, v%d, v%d quad_perm:[1,0,3,2] row_mask:0xf bank_mask:0xf' % (Mx, m, m))
    a('v_max_f32_dpp v%d, v%d, v%d quad_perm:[2,3,0,1] row_mask:0xf bank_mask:0xf' % (Mx, Mx, Mx))
    a('v_max_f32_dpp v%d, v%d, v%d row_half_mirror row_mask:0xf bank_mask:0xf' % (Mx, Mx, Mx))
    a('v_sub_f32 v%d, v%d, v%d' % (w_, m, Mx))
    a('v_mul_f32 v%d, %s, v%d' % (w_, CS, w_))
    a('v_exp_f32 v%d, v%d' % (w_, w_))
    a('v_mul_f32 v%d, v%d, v%d' % (L_, l, w_))
    for j in range(4):
        a('v_mul_f32 v%d, v%d, v%d' % (vPo + j, vPo + j, w_))
    five = [L_, vPo, vPo + 1, vPo + 2, vPo + 3]
    for ctl in ('quad_perm:[1,0,3,2]', 'quad_perm:[2,3,0,1]', 'row_half_mirror'):
        for r in five:
            a('v_add_f32_dpp v%d, v%d, v%d %s row_mask:0xf bank_mask:0xf' % (r, r, r, ctl))
    a('v_rcp_f32 v%d, v%d' % (L_, L_))
    a('v_mul_f32 v%d, v%d, v%d' % (L_, L_, vG))
    for j in range(4):
        a('v_mul_f32 v%d, v%d, v%d' % (vPo + j, vPo + j, L_))
    a('v_cvt_pk_bf16_f32 v74, v%d, v%d' % (vPo, vPo + 1))
    a('v_cvt_pk_bf16_f32 v75, v%d, v%d' % (vPo + 2, vPo + 3))
    a('v_lshrrev_b32 v%d, 3, v%d' % (vT0, vL))
    a('v_lshlrev_b32 v%d, 3, v%d' % (vT0, vT0))
    a('s_mov_b32 exec_lo, 0x01010101')
    a('s_mov_b32 exec_hi, 0x01010101')
    a('ds_write_b64 v%d, v[74:75] offset:%d' % (vT0, OCB))
    a('s_mov_b64 exec, -1')
    a('s_waitcnt lgkmcnt(0)')
    a('s_barrier')
    stamp('B4')
    a('s_cmp_ge_u32 s%d, 28' % sN)
    a('s_cbranch_scc1 L_FIN')
    a('s_mov_b32 s%d, %d' % (sSPIN, cfg['spin']))
    a('v_add_u32 v%d, 4096, v%d' % (vT0, vPY))
    a.label('L_POLL2')
    for k in range(8):
        a('global_load_dwordx4 %s, v%d, %s offset:%d sc1' % (vr(64 + 4 * k, 4), vPY if k < 4 else vT0, sr(pWS, 2), (k % 4) * 1024))
    a('s_sub_u32 s%d, s%d, 1' % (sSPIN, sSPIN))
    a('s_cmp_eq_u32 s%d, 0' % sSPIN)
    a('s_waitcnt vmcnt(0)')
    a('s_cbranch_scc1 L_POLL2_DONE')
    a('v_max3_u32 v100, v64, v65, v66')
    a('v_max3_u32 v101, v67, v68, v69')
    for k in range(70, 94, 4):
        a('v_max3_u32 v100, v100, v%d, v%d' % (k, k + 1))
        a('v_max3_u32 v101, v101, v%d, v%d' % (k + 2, k + 3))
    a('v_max3_u32 v100, v100, v94, v95')
    a('v_max_u32 v100, v100, v101')
    a('v_cmp_eq_u32 vcc, -1, v100')
    a('s_cbranch_vccnz L_POLL2')
    a.label('L_POLL2_DONE')
    a('s_nop 0')
    stamp('hop2 data')
    for step in (16, 8, 4):
        for base in range(64, 64 + step, 4):
            for j in range(4):
                a('v_add_f32 v%d, v%d, v%d' % (base + j, base + j, base + step + j))
    for n in (8, 4, 2, 1):
        for j in range(4):
            a('v_add_f32_dpp v%d, v%d, v%d row_ror:%d row_mask:0xf bank_mask:0xf' % (64 + j, 64 + j, 64 + j, n))
    for j in range(4):
        a('v_add_f32 v%d, v%d, v%d' % (64 + j, 64 + j, vB2F + j))
    a('v_cvt_pk_bf16_f32 v64, v64, v65')
    a('v_cvt_pk_bf16_f32 v65, v66, v67')
    a('s_mul_i32 s%d, s%d, 896' % (sT1, sB))
    a('s_lshl_b32 s%d, s%d, 5' % (sT2, sN))
    a('s_add_u32 s%d, s%d, s%d' % (sT1, sT1, sT2))
    a('v_lshrrev_b32 v%d, 4, v%d' % (vT0, vL))
    a('v_lshl_add_u32 v%d, v%d, 3, s%d' % (vT0, vT0, sT1))
    a('s_mov_b32 exec_lo, 0x00010001')
    a('s_mov_b32 exec_hi, 0x00010001')
    a('global_store_dwordx2 v%d, v[64:65], %s' % (vT0, sr(pOUT, 2)))
    a('s_mov_b64 exec, -1')
    stamp('out stored')

    a('s_branch L_FIN')

    a.label('L_YPART')
    a.restore('w7')
    a('v_lshrrev_b32 v%d, 3, v%d' % (vT0, vL))
    a('v_lshlrev_b32 v%d, 3, v%d' % (vT0, vT0))
    a('s_barrier')
    a('ds_read_b64 v[74:75], v%d offset:%d' % (vT0, OCB))
    for j in range(8):
        a('v_dot2_f32_bf16 v%d, v%d, v74, v%d' % (vACCF + j, WP[0][j], vACCF + j))
    for j in range(8):
        a('v_dot2_f32_bf16 v%d, v%d, v75, v%d' % (vACCF + j, WP[1][j], vACCF + j))
    y = vACCF
    for j in range(4):
        a('v_permlane32_swap_b32 v%d, v%d' % (y + j, y + j + 4))
    for j in range(4):
        a('v_add_f32 v%d, v%d, v%d' % (y + j, y + j, y + j + 4))
    a('v_permlane16_swap_b32 v%d, v%d' % (y, y + 2))
    a('v_permlane16_swap_b32 v%d, v%d' % (y + 1, y + 3))
    a('v_add_f32 v%d, v%d, v%d' % (y, y, y + 2))
    a('v_add_f32 v%d, v%d, v%d' % (y + 1, y + 1, y + 3))
    a('v_add_f32_dpp v%d, v%d, v%d row_ror:8 row_mask:0xf bank_mask:0xf' % (y, y, y))
    a('v_add_f32_dpp v%d, v%d, v%d row_ror:8 row_mask:0xf bank_mask:0xf' % (y + 1, y + 1, y + 1))
    a('s_mov_b32 exec_lo, 0x00ff00ff')
    a('s_mov_b32 exec_hi, 0x00ff00ff')
    a('global_store_dwordx2 v%d, %s, %s sc1' % (vAY, vr(y, 2), sr(pWS, 2)))
    a('s_mov_b64 exec, -1')
    stamp('y published')

    a.label('L_FIN')
    if cfg['stamps']:
        a('s_nop 4')
        a('s_memrealtime s[100:101]')
        a('s_waitcnt lgkmcnt(0)')
        a('v_writelane_b32 v31, s100, 63')
        a('s_lshl_b32 s94, s2, 3')
        a('s_add_u32 s94, s94, s%d' % sW)
        a('s_lshl_b32 s94, s94, 8')
        a('s_add_u32 s94, s94, %d' % STREG)
        a('v_lshl_add_u32 v30, v%d, 2, s94' % vL)
        a('global_store_dword v30, v31, %s' % sr(pWS, 2))
        if cfg['dbgtime']:
            sel = cfg['dbgtime']
            a('s_add_u32 s94, s%d, 1' % sW)
            a('s_and_b32 s94, s94, 7')
            a('s_cmp_gt_u32 s94, 1')
            a('s_cbranch_scc1 L_NODBG')
            a('v_mov_b32 v29, 0')
            for i, nm in enumerate(sel):
                src = stamp_ids[nm] if nm != 'end' else 63
                a('v_readlane_b32 s94, v31, %d' % src)
                if i == 0:
                    a('s_not_b32 s94, s94')
                a('s_nop 3')
                a('v_writelane_b32 v29, s94, %d' % i)
            a('v_lshlrev_b32 v28, 2, v%d' % vL)
            a('s_mov_b64 exec, 0xffff')
            a('global_atomic_umax v28, v29, %s' % sr(pDBG, 2))
            a('s_mov_b64 exec, -1')
            a.label('L_NODBG')
    a('s_endpgm')

    a.label('L_CHK_SLOW')
    a.restore('chk')
    a('s_mov_b32 s%d, %d' % (sSPIN, cfg['spin']))
    a.label('L_CHK_LOOP')
    a('global_load_dword v%d, v%d, %s sc1' % (vCHK, vSPARE, sr(pDBG, 2)))
    a('s_sub_u32 s%d, s%d, 1' % (sSPIN, sSPIN))
    a('s_cmp_eq_u32 s%d, 0' % sSPIN)
    a('s_waitcnt vmcnt(0)')
    a('s_cbranch_scc1 L_CHK_OK')
    a('v_cmp_ne_u32 vcc, 8, v%d' % vCHK)
    a('s_cbranch_vccnz L_CHK_LOOP')
    a('s_branch L_CHK_OK')
    a.label('L_END')
    body = a.finalize()
    return body


HEADER = open('cdna_kernels/%s.s.ref' % NAME).read().split('; Override launch geometry')[0]


def wrap(body, cfg):
    s = HEADER
    s += '; Override launch geometry by editing the next line (default: block=256,\n'
    s += '; grid=ceil(out_elems/256), lds=0). Harness parses it; keep it on one line.\n'
    s += '; @launch grid=(256,1,1) block=(512,1,1) lds=%d\n' % LDS_BYTES
    s += '.amdgcn_target "amdgcn-amd-amdhsa--gfx950"\n.text\n.globl %s_kernel\n.p2align 8\n' % NAME
    s += '.type %s_kernel,@function\n%s_kernel:\n' % (NAME, NAME)
    s += body
    s += 's_endpgm\n'
    s += '.section .rodata,"a"\n.p2align 6\n.amdhsa_kernel %s_kernel\n' % NAME
    s += '  .amdhsa_next_free_vgpr 256\n  .amdhsa_next_free_sgpr 102\n  .amdhsa_accum_offset 256\n'
    s += '  .amdhsa_group_segment_fixed_size 0\n  .amdhsa_kernarg_size 112\n  .amdhsa_user_sgpr_count 2\n'
    s += '  .amdhsa_user_sgpr_kernarg_segment_ptr 1\n  .amdhsa_system_sgpr_workgroup_id_x 1\n.end_amdhsa_kernel\n'
    return s


def build(out, **kw):
    cfg = dict(DEFAULT)
    cfg.update(kw)
    s = wrap(gen(cfg), cfg)
    open(out, 'w').write(s)
    return s


if __name__ == '__main__':
    out = sys.argv[1] if len(sys.argv) > 1 else 'cdna_kernels/%s.s' % NAME
    kw = {}
    for arg in sys.argv[2:]:
        k, v = arg.split('=')
        kw[k] = eval(v)
    build(out, **kw)
    print('wrote', out)
```

```python
import sys
from asmlib import Asm

NAME = 'gated_mix__mha_block_cached__dense_activation_gelu__decode'

DEFAULT = dict(
    nt_kv=True,
    nt_w='q12ox',
    gran=4,
    kpre=16,
    nve=4,
    nvk=8,
    nvb=10,
    win=12,
    skip7=True,
    dbgtime=False,
    delay=0,
    empty=False,
    stop=None,
    stamps=False,
    chk_u=4,
    spin=20000,
)

sXCD, sH, sB, sC, sW, sN = 3, 4, 5, 6, 7, 8
sR, sR1, sLI, sSL, sVAL, sW6 = 9, 10, 11, 12, 13, 14
sT0 = 15
pX, pK, pV, pWQ, pWO, pW1, pB1 = 16, 18, 20, 22, 24, 28, 30
pW2, pB2, pG, pOUT, pDBG, pWS = 32, 34, 36, 38, 40, 42
rK, rV, rWQ, rX, rW1, rW2, rWO, rG, rB1, rB2 = 44, 48, 52, 56, 60, 64, 68, 72, 76, 80
sSELLO, sSELHI = 84, 85
sOFF = 86
sWQO = 93
sT1, sT2 = 94, 95
sKVO = 26
sM1 = 96
sM0 = 98
sSPIN = 100
sSTAMP = 101

vL = 0
vO16 = 1
vWQ = 2
vAO = 3
vAML = 4
vAY = 5
vPO = 6
vPML = 7
vPY = 8
vLQW = 9
vLOW = 10
vLB = 11
vLOR = 12
vT0, vT1, vT2 = 13, 14, 15
vXQ = 16
vACCF = 16
vACC = 32
vQ = 40
vR = 44
vT = 48
vU = 56
RING = 64
XR = 192
vPP = 176
VE = 240
vW1, vW2, vWO = 192, 200, 208
vXG, vGW, vXW1, vB1, vB2, vCHK = 224, 228, 232, 233, 234, 236
vG, vOMG = 237, 238
vSPARE = 239

QBUF, OBUF, OSTR = 0, 8192, 1040
MX, LW, HB, OCB = 16640, 16672, 16704, 17216
LDS_BYTES = 17408

OREG = 0
YREG = 0x80000
YB = 32 * 8192
STREG = 0x200000
CNT = 128

LOG2E = 1.4426950408889634


def f2h(x):
    import struct
    return '0x%08x' % struct.unpack('<I', struct.pack('<f', x))[0]


def slot(t):
    return RING + 4 * t


def vslot(t):
    return VE + 4 * t if t < 4 else RING + 4 * (t - 4)


def vr(a, n):
    return 'v[%d:%d]' % (a, a + n - 1)


def sr(a, n):
    return 's[%d:%d]' % (a, a + n - 1)


def gen(cfg):
    a = Asm()
    NT = ' nt' if cfg['nt_kv'] else ''
    NWQ, NW1, NW2, NWO, NW = [' nt' if ch in cfg['nt_w'] else '' for ch in 'q12ox']
    gran = cfg['gran']

    def kvoff(t):
        return (t // gran) * gran * 8192 + (t % gran) * 1024
    nstamp = [0]
    stamp_ids = {}

    def stamp(name):
        if not cfg['stamps']:
            return
        i = nstamp[0]
        nstamp[0] += 1
        stamp_ids[name] = i
        a.c('stamp %d %s' % (i, name))
        a('s_memrealtime s[100:101]')
        a('s_waitcnt lgkmcnt(0)')
        a('v_writelane_b32 v31, s100, %d' % i)

    def srd(r, base, off_sgpr, nrec):
        if off_sgpr is None:
            a('s_mov_b32 s%d, s%d' % (r, base))
            a('s_mov_b32 s%d, s%d' % (r + 1, base + 1))
        else:
            a('s_add_u32 s%d, s%d, s%d' % (r, base, off_sgpr))
            a('s_addc_u32 s%d, s%d, 0' % (r + 1, base + 1))
        a('s_mov_b32 s%d, %s' % (r + 2, nrec))
        a('s_mov_b32 s%d, 0x00020000' % (r + 3))

    def kv_load(rs, t):
        reg = slot(t) if rs == rK else vslot(t)
        if gran >= 4:
            so = '0' if t < 4 else 's%d' % (sOFF + t // 4 - 1)
            off = (t % 4) * 1024
        else:
            off = 0
            so = '0'
            if t > 0:
                a('s_mov_b32 s%d, %d' % (sKVO, kvoff(t)))
                so = 's%d' % sKVO
        a('buffer_load_dwordx4 %s, v%d, %s, %s offen offset:%d%s' % (vr(reg, 4), vO16, sr(rs, 4), so, off, NT))

    vissued = [0]

    def v_upto(n):
        n = min(n, 32)
        while vissued[0] < n:
            kv_load(rV, vissued[0])
            vissued[0] += 1

    def allred(op, reg, tmp):
        for n in (8, 4, 2, 1):
            a('%s_dpp v%d, v%d, v%d row_ror:%d row_mask:0xf bank_mask:0xf' % (op, reg, reg, reg, n))
        a('v_mov_b32 v%d, v%d' % (tmp, reg))
        a('v_permlane16_swap_b32 v%d, v%d' % (reg, tmp))
        a('%s v%d, v%d, v%d' % (op, reg, reg, tmp))
        a('v_mov_b32 v%d, v%d' % (tmp, reg))
        a('v_permlane32_swap_b32 v%d, v%d' % (reg, tmp))
        a('%s v%d, v%d, v%d' % (op, reg, reg, tmp))

    def rnd_bf16(dst, src):
        a('v_cvt_pk_bf16_f32 v%d, v%d, v%d' % (dst, src, src))
        a('v_and_b32 v%d, 0xffff0000, v%d' % (dst, dst))

    a('s_cmp_ge_u32 s2, %d' % (0 if cfg['empty'] else 256))
    a('s_cbranch_scc1 L_END')
    a('s_load_dwordx16 s[16:31], s[0:1], 0')
    a('s_load_dwordx8 s[32:39], s[0:1], 64')
    a('s_load_dwordx4 s[40:43], s[0:1], 96')
    if cfg['stamps']:
        a('v_mov_b32 v31, 0')
    a('v_lshrrev_b32 v%d, 6, v0' % vT0)
    a('v_and_b32 v%d, 63, v0' % vL)
    a('v_readfirstlane_b32 s%d, v%d' % (sW, vT0))
    a('s_and_b32 s%d, s2, 7' % sXCD)
    a('s_lshr_b32 s%d, s2, 3' % sR)
    a('s_and_b32 s%d, s%d, 1' % (sR1, sR))
    a('s_lshl_b32 s%d, s%d, 3' % (sLI, sR1))
    a('s_add_u32 s%d, s%d, s%d' % (sH, sLI, sXCD))
    a('s_lshr_b32 s%d, s%d, 1' % (sB, sR))
    a('s_and_b32 s%d, s%d, 1' % (sB, sB))
    a('s_lshr_b32 s%d, s%d, 2' % (sC, sR))
    a('s_lshl_b32 s%d, s%d, 4' % (sN, sC))
    a('s_add_u32 s%d, s%d, s%d' % (sN, sN, sH))
    a('s_add_u32 s%d, s%d, s%d' % (sLI, sLI, sC))
    a('s_mul_i32 s%d, s%d, 14' % (sSL, sXCD))
    a('s_add_u32 s%d, s%d, s%d' % (sSL, sSL, sLI))
    a('s_cmp_lt_u32 s%d, 14' % sLI)
    a('s_cselect_b32 s%d, s%d, 0' % (sSL, sSL))
    a('s_cselect_b32 s%d, -1, 0' % sVAL)
    a('s_min_u32 s%d, s%d, 6' % (sW6, sW))
    a('s_mov_b32 s%d, 0x05040100' % sSELLO)
    a('s_mov_b32 s%d, 0x07060302' % sSELHI)
    if gran >= 4:
        for j in range(1, 8):
            a('s_mov_b32 s%d, %d' % (sOFF + j - 1, kvoff(4 * j)))
    a('v_lshlrev_b32 v%d, 4, v%d' % (vO16, vL))
    a('v_lshrrev_b32 v%d, 5, v%d' % (vT0, vL))
    a('v_and_b32 v%d, 31, v%d' % (vT1, vL))
    a('v_mul_u32_u24 v%d, 0x38000, v%d' % (vWQ, vT0))
    a('v_lshl_add_u32 v%d, v%d, 4, v%d' % (vWQ, vT1, vWQ))
    a('v_lshlrev_b32 v%d, 4, v%d' % (vLB, vT0))
    a('v_lshl_add_u32 v%d, v%d, 5, v%d' % (vLB, vT1, vLB))
    a('v_mul_u32_u24 v%d, 56, v%d' % (vT2, vT0))
    a('s_lshl_b32 s%d, s%d, 4' % (sT0, sB))
    a('s_add_u32 s%d, s%d, s%d' % (sT0, sT0, sH))
    a('s_lshl_b32 s%d, s%d, 21' % (sT1, sT0))
    a('s_lshl_b32 s%d, s%d, 18' % (sT2, sC))
    a('s_add_u32 s%d, s%d, s%d' % (sT1, sT1, sT2))
    a('s_mul_i32 s%d, s%d, %d' % (sT2, sW, gran * 1024))
    a('s_add_u32 s%d, s%d, s%d' % (sT1, sT1, sT2))
    stamp('entry')
    a('s_waitcnt lgkmcnt(0)')
    stamp('kernarg')
    a('s_mul_i32 s%d, s%d, 896' % (sT2, sB))
    srd(rX, pX, sT2, '896')
    srd(rK, pK, sT1, str(kvoff(31) + 1024))
    srd(rV, pV, sT1, str(kvoff(31) + 1024))
    a('s_mul_i32 s%d, s%d, 112' % (sT2, sW))
    for k in range(3):
        a('buffer_load_dwordx4 %s, v%d, %s, s%d offen offset:%d%s' % (vr(vXQ + 4 * k, 4), vT2, sr(rX, 4), sT2, 16 * k, NW))
    a('buffer_load_dwordx2 %s, v%d, %s, s%d offen offset:48%s' % (vr(vXQ + 12, 2), vT2, sr(rX, 4), sT2, NW))
    a.c('sentinel clears (wave 0)')
    a('s_cmp_lg_u32 s%d, 0' % sW)
    a('s_cbranch_scc1 L_NOCLR')
    for k in range(4):
        a('v_mov_b32 v%d, -1' % (vR + k))
    a('s_lshl_b32 s%d, s%d, 14' % (sT1, sT0))
    a('s_lshl_b32 s%d, s%d, 7' % (sT2, sC))
    a('s_add_u32 s%d, s%d, s%d' % (sT2, sT2, sT1))
    a('v_lshrrev_b32 v48, 3, v%d' % vL)
    a('v_and_b32 v49, 7, v%d' % vL)
    a('v_lshlrev_b32 v48, 11, v48')
    a('v_lshl_add_u32 v48, v49, 4, v48')
    a('v_add_u32 v48, s%d, v48' % sT2)
    a('global_store_dwordx4 v48, %s, %s sc1' % (vr(vR, 4), sr(pWS, 2)), tag='clr', optional=True)
    a('s_lshl_b32 s%d, s%d, 3' % (sT2, sC))
    a('s_add_u32 s%d, s%d, s%d' % (sT2, sT2, sT1))
    a('s_add_u32 s%d, s%d, 1024' % (sT2, sT2))
    a('v_lshl_add_u32 v50, v%d, 11, s%d' % (vL, sT2))
    a('s_mov_b64 exec, 0xff')
    a('global_store_dwordx2 v50, %s, %s sc1' % (vr(vR, 2), sr(pWS, 2)), tag='clr', optional=True)
    a('s_mov_b64 exec, -1')
    a('s_mul_i32 s%d, s%d, %d' % (sT1, sB, YB))
    a('s_lshl_b32 s%d, s%d, 6' % (sT2, sN))
    a('s_add_u32 s%d, s%d, s%d' % (sT1, sT1, sT2))
    a('s_add_u32 s%d, s%d, %d' % (sT1, sT1, YREG))
    a('v_lshrrev_b32 v51, 2, v%d' % vL)
    a('v_and_b32 v52, 3, v%d' % vL)
    a('v_lshlrev_b32 v51, 13, v51')
    a('v_lshl_add_u32 v51, v52, 4, v51')
    a('v_add_u32 v51, s%d, v51' % sT1)
    a('v_add_u32 v52, 0x20000, v51')
    a('global_store_dwordx4 v51, %s, %s sc1' % (vr(vR, 4), sr(pWS, 2)), tag='clr', optional=True)
    a('s_mov_b32 exec_hi, 0xffff')
    a('global_store_dwordx4 v52, %s, %s sc1' % (vr(vR, 4), sr(pWS, 2)), tag='clr', optional=True)
    a('s_mov_b64 exec, -1')
    a.label('L_NOCLR')
    a('s_mul_i32 s%d, s%d, %d' % (sT1, sW, 56 * 8192))
    a('s_lshl_b32 s%d, s%d, 9' % (sT2, sH))
    a('s_add_u32 s%d, s%d, s%d' % (sT1, sT1, sT2))
    srd(rWQ, pWQ, sT1, '451072')

    def wq_regs(u):
        if u < 8:
            return slot(16 + 2 * u), slot(17 + 2 * u)
        return XR + 8 * (u - 8), XR + 8 * (u - 8) + 4

    kpre = cfg['kpre']
    kq = list(range(kpre))
    for u in range(14):
        if kq:
            kv_load(rK, kq.pop(0))
        A, B = wq_regs(u)
        for j, r in enumerate((A, B)):
            row = 2 * u + j
            if row == 0:
                a('buffer_load_dwordx4 %s, v%d, %s, 0 offen%s' % (vr(r, 4), vWQ, sr(rWQ, 4), NWQ))
            else:
                a('s_mov_b32 s%d, %d' % (sWQO, row * 8192))
                a('buffer_load_dwordx4 %s, v%d, %s, s%d offen%s' % (vr(r, 4), vWQ, sr(rWQ, 4), sWQO, NWQ))
    while kq:
        kv_load(rK, kq.pop(0))
    stamp('prologue issued')

    a.c('hand-off addresses')
    a('s_lshl_b32 s%d, s%d, 3' % (sT1, sT0))
    a('s_add_u32 s%d, s%d, s%d' % (sT2, sT1, sW))
    a('s_lshl_b32 s%d, s%d, 11' % (sT2, sT2))
    a('s_lshl_b32 s%d, s%d, 7' % (sWQO, sC))
    a('s_add_u32 s%d, s%d, s%d' % (sWQO, sWQO, sT2))
    a('v_lshrrev_b32 v%d, 3, v%d' % (vT0, vL))
    a('v_and_b32 v%d, 7, v%d' % (vT1, vL))
    a('v_lshl_add_u32 v%d, v%d, 4, s%d' % (vAO, vT0, sWQO))
    a('s_lshl_b32 s%d, s%d, 3' % (sWQO, sC))
    a('s_add_u32 s%d, s%d, s%d' % (sWQO, sWQO, sT2))
    a('s_add_u32 s%d, s%d, 1024' % (sWQO, sWQO))
    a('v_mov_b32 v%d, s%d' % (vAML, sWQO))
    a('s_add_u32 s%d, s%d, s%d' % (sT2, sT1, sC))
    a('s_lshl_b32 s%d, s%d, 11' % (sT2, sT2))
    a('v_lshlrev_b32 v%d, 7, v%d' % (vPO, vT1))
    a('v_lshl_add_u32 v%d, v%d, 4, v%d' % (vPO, vT0, vPO))
    a('v_add_u32 v%d, s%d, v%d' % (vPO, sT2, vPO))
    a('s_add_u32 s%d, s%d, 1024' % (sT2, sT2))
    a('v_lshl_add_u32 v%d, v%d, 3, s%d' % (vPML, vT1, sT2))
    a('s_mul_i32 s%d, s%d, %d' % (sT1, sB, YB))
    a('s_add_u32 s%d, s%d, %d' % (sT1, sT1, YREG))
    a('s_lshl_b32 s%d, s%d, 15' % (sT2, sW))
    a('s_add_u32 s%d, s%d, s%d' % (sT2, sT2, sT1))
    a('s_lshl_b32 s%d, s%d, 6' % (sWQO, sN))
    a('s_add_u32 s%d, s%d, s%d' % (sT2, sT2, sWQO))
    a('v_lshrrev_b32 v%d, 1, v%d' % (vT2, vT1))
    a('v_lshlrev_b32 v%d, 13, v%d' % (vAY, vT2))
    a('v_and_b32 v%d, 1, v%d' % (vT2, vL))
    a('v_lshl_add_u32 v%d, v%d, 5, v%d' % (vAY, vT2, vAY))
    a('v_lshrrev_b32 v%d, 5, v%d' % (vT2, vL))
    a('v_lshl_add_u32 v%d, v%d, 4, v%d' % (vAY, vT2, vAY))
    a('v_bfe_u32 v%d, v%d, 4, 1' % (vT2, vL))
    a('v_lshl_add_u32 v%d, v%d, 3, v%d' % (vAY, vT2, vAY))
    a('v_add_u32 v%d, s%d, v%d' % (vAY, sT2, vAY))
    a('s_min_u32 s%d, s%d, 27' % (sT2, sN))
    a('s_lshl_b32 s%d, s%d, 13' % (sT2, sT2))
    a('s_add_u32 s%d, s%d, s%d' % (sT2, sT2, sT1))
    a('v_and_b32 v%d, 15, v%d' % (vT2, vL))
    a('v_lshlrev_b32 v%d, 6, v%d' % (vPY, vT2))
    a('v_lshrrev_b32 v%d, 4, v%d' % (vT2, vL))
    a('v_lshl_add_u32 v%d, v%d, 4, v%d' % (vPY, vT2, vPY))
    a('v_add_u32 v%d, s%d, v%d' % (vPY, sT2, vPY))
    a('s_lshl_b32 s%d, s%d, 10' % (sT1, sW))
    a('v_add_u32 v%d, s%d, v%d' % (vLQW, sT1, vLB))
    a('s_mul_i32 s%d, s%d, %d' % (sT1, sW, OSTR))
    a('s_add_u32 s%d, s%d, %d' % (sT1, sT1, OBUF))
    a('v_add_u32 v%d, s%d, v%d' % (vLOW, sT1, vLB))
    a('v_mul_u32_u24 v%d, %d, v%d' % (vLOR, OSTR, vT1))
    a('v_lshl_add_u32 v%d, v%d, 4, v%d' % (vLOR, vT0, vLOR))
    a('s_lshl_b32 s%d, s%d, 7' % (sT1, sW))
    a('s_add_u32 s%d, s%d, %d' % (sT1, sT1, OBUF))
    a('v_add_u32 v%d, s%d, v%d' % (vLOR, sT1, vLOR))
    a('s_mov_b32 s%d, 0xcccccccc' % sM1)
    a('s_mov_b32 s%d, 0xcccccccc' % (sM1 + 1))
    a('s_mov_b32 s%d, 0xaaaaaaaa' % sM0)
    a('s_mov_b32 s%d, 0xaaaaaaaa' % (sM0 + 1))

    a.c('q phase')
    knext = kpre
    for u in range(14):
        A, B = wq_regs(u)
        for k in range(4):
            a('v_perm_b32 v%d, v%d, v%d, s%d' % (vT + 2 * k, B + k, A + k, sSELLO))
            a('v_perm_b32 v%d, v%d, v%d, s%d' % (vT + 2 * k + 1, B + k, A + k, sSELHI))
        if u == 0:
            stamp('first wq pair')
            a.save('flag')
            a('s_cmp_lg_u32 s%d, 0' % sW)
            a('s_cbranch_scc1 L_NOFLAG')
            a('s_lshl_b32 s%d, s%d, 2' % (sT1, sT0))
            a('s_add_u32 s%d, s%d, %d' % (sT1, sT1, CNT))
            a('v_mov_b32 v%d, s%d' % (vT0, sT1))
            a('v_mov_b32 v%d, 1' % vT1)
            a.wait_tag('clr')
            a('s_mov_b64 exec, 1')
            a('global_atomic_add v%d, v%d, %s' % (vT0, vT1, sr(pDBG, 2)), optional=True)
            a('s_mov_b64 exec, -1')
            a.label('L_NOFLAG')
            a.restore('flag')
        lim = 16 + 2 * u + 2 if u < 8 else 32
        while knext < min(lim, 32) and (knext < 16 or u >= (knext - 16) // 2):
            kv_load(rK, knext)
            knext += 1
        for j in range(8):
            c = '0' if u == 0 else 'v%d' % (vACC + j)
            a('v_dot2_f32_bf16 v%d, v%d, v%d, %s' % (vACC + j, vT + j, vXQ + u, c))
    assert knext == 32
    stamp('q dots done')
    for j in range(4):
        a('v_permlane32_swap_b32 v%d, v%d' % (vACC + j, vACC + j + 4))
    for j in range(4):
        a('v_add_f32 v%d, v%d, v%d' % (vR + j, vACC + j, vACC + j + 4))
    a('ds_write_b128 v%d, %s' % (vLQW, vr(vR, 4)))
    v_upto(cfg['nve'])
    a('s_waitcnt lgkmcnt(0)')
    a('s_barrier')
    stamp('B1')
    for k in range(8):
        a('ds_read_b128 %s, v%d offset:%d' % (vr(XR + 4 * k, 4), vLB, QBUF + k * 1024))
    for k in range(1, 8):
        for j in range(4):
            a('v_add_f32 v%d, v%d, v%d' % (XR + j, XR + j, XR + 4 * k + j))
    a('v_cvt_pk_bf16_f32 v%d, v%d, v%d' % (vQ, XR, XR + 1))
    a('v_cvt_pk_bf16_f32 v%d, v%d, v%d' % (vQ + 1, XR + 2, XR + 3))
    a('v_mov_b32 v%d, v%d' % (vQ + 2, vQ))
    a('v_mov_b32 v%d, v%d' % (vQ + 3, vQ + 1))
    a('v_permlane32_swap_b32 v%d, v%d' % (vQ, vQ + 2))
    a('v_permlane32_swap_b32 v%d, v%d' % (vQ + 1, vQ + 3))
    stamp('q ready')

    def small_loads():
        a.c('w1 / w2 / wo / gate / bias loads')
        a('s_mul_i32 s%d, s%d, %d' % (sT1, sW6, 64 * 3584))
        a('s_lshl_b32 s%d, s%d, 5' % (sT2, sSL))
        a('s_add_u32 s%d, s%d, s%d' % (sT1, sT1, sT2))
        if cfg['skip7']:
            a('s_cmp_eq_u32 s%d, 7' % sW)
            a('s_cselect_b32 s%d, 0, s%d' % (sKVO + 1, sVAL))
        else:
            a('s_mov_b32 s%d, s%d' % (sKVO + 1, sVAL))
        a('s_and_b32 s%d, s%d, %d' % (sWQO, sKVO + 1, 63 * 3584 + 32))
        srd(rW1, pW1, sT1, 's%d' % sWQO)
        a('s_and_b32 s%d, s%d, 32' % (sWQO, sVAL))
        srd(rB1, pB1, sT2, 's%d' % sWQO)
        a('s_mul_i32 s%d, s%d, %d' % (sT1, sSL, 16 * 896))
        a('s_lshl_b32 s%d, s%d, 7' % (sT2, sW6))
        a('s_add_u32 s%d, s%d, s%d' % (sT1, sT1, sT2))
        a('s_and_b32 s%d, s%d, %d' % (sWQO, sKVO + 1, 15 * 896 + 128))
        srd(rW2, pW2, sT1, 's%d' % sWQO)
        a('s_lshl_b32 s%d, s%d, 8' % (sT1, sH))
        a('s_lshl_b32 s%d, s%d, 5' % (sWQO, sC))
        a('s_add_u32 s%d, s%d, s%d' % (sT1, sT1, sWQO))
        a('s_mul_i32 s%d, s%d, 896' % (sT1, sT1))
        a('s_add_u32 s%d, s%d, s%d' % (sT1, sT1, sT2))
        if cfg['skip7']:
            a('s_cmp_eq_u32 s%d, 7' % sW)
            a('s_cselect_b32 s%d, 0, %d' % (sWQO, 31 * 896 + 128))
            srd(rWO, pWO, sT1, 's%d' % sWQO)
        else:
            srd(rWO, pWO, sT1, str(31 * 896 + 128))
        srd(rG, pG, None, '896')
        srd(rB2, pB2, None, '896')
        a('v_and_b32 v%d, 31, v%d' % (vT0, vL))
        a('v_mul_u32_u24 v%d, 7168, v%d' % (vT1, vT0))
        a('v_lshrrev_b32 v%d, 5, v%d' % (vT2, vL))
        a('v_lshl_add_u32 v%d, v%d, 4, v%d' % (vT1, vT2, vT1))
        a('buffer_load_dwordx4 %s, v%d, %s, 0 offen%s' % (vr(vW1, 4), vT1, sr(rW1, 4), NW1))
        a('buffer_load_dwordx4 %s, v%d, %s, 0 offen offset:3584%s' % (vr(vW1 + 4, 4), vT1, sr(rW1, 4), NW1))
        a('v_lshlrev_b32 v%d, 2, v%d' % (vT0, vT0))
        a('buffer_load_dword v%d, v%d, %s, s%d offen%s' % (vXW1, vT0, sr(rX, 4), sT2, NW))
        a('buffer_load_dwordx4 %s, v%d, %s, 0 offen%s' % (vr(vXG, 4), vO16, sr(rX, 4), NW))
        a('buffer_load_dwordx4 %s, v%d, %s, 0 offen%s' % (vr(vGW, 4), vO16, sr(rG, 4), NW))
        a('v_lshrrev_b32 v%d, 3, v%d' % (vT0, vL))
        a('v_and_b32 v%d, 7, v%d' % (vT1, vL))
        a('v_lshlrev_b32 v%d, 4, v%d' % (vT1, vT1))
        a('v_lshlrev_b32 v%d, 2, v%d' % (vT2, vT0))
        a('buffer_load_dword v%d, v%d, %s, 0 offen%s' % (vB1, vT2, sr(rB1, 4), NW))
        a('v_mul_u32_u24 v%d, 1792, v%d' % (vT2, vT0))
        a('v_add_u32 v%d, v%d, v%d' % (vT2, vT2, vT1))
        a('buffer_load_dwordx4 %s, v%d, %s, 0 offen%s' % (vr(vW2, 4), vT2, sr(rW2, 4), NW2))
        a('buffer_load_dwordx4 %s, v%d, %s, 0 offen offset:896%s' % (vr(vW2 + 4, 4), vT2, sr(rW2, 4), NW2))
        a('v_mul_u32_u24 v%d, 3584, v%d' % (vT2, vT0))
        a('v_add_u32 v%d, v%d, v%d' % (vT2, vT2, vT1))
        for k in range(4):
            a('buffer_load_dwordx4 %s, v%d, %s, 0 offen offset:%d%s' % (vr(vWO + 4 * k, 4), vT2, sr(rWO, 4), 896 * k, NWO))
        a('s_min_u32 s%d, s%d, 27' % (sT1, sN))
        a('s_lshl_b32 s%d, s%d, 5' % (sT1, sT1))
        a('v_lshrrev_b32 v%d, 4, v%d' % (vT0, vL))
        a('v_lshlrev_b32 v%d, 3, v%d' % (vT0, vT0))
        a('buffer_load_dwordx2 %s, v%d, %s, s%d offen%s' % (vr(vB2, 2), vT0, sr(rB2, 4), sT1, NW))

    small_loads()

    a.c('K phase')
    pool = [24, 25, 26, 27, 28, 29, 30, 56, 57, 58, 59, 60, 61, 62, 63, 48, 49, 50, 51, 52, 53, 54, 55]
    if not cfg['stamps']:
        pool.append(31)
    levels = {1: [], 2: [], 3: [], 4: [], 5: []}

    def merge(level, x, y):
        if level == 1:
            d = pool.pop(0)
            a('v_add_f32_dpp v%d, v%d, v%d row_ror:8 row_mask:0xf bank_mask:0x3' % (d, x, x))
            a('v_add_f32_dpp v%d, v%d, v%d row_ror:8 row_mask:0xf bank_mask:0xc' % (d, y, y))
            pool.extend([x, y])
            return d
        if level == 2:
            d = pool.pop(0)
            a('v_add_f32_dpp v%d, v%d, v%d row_shl:4 row_mask:0xf bank_mask:0x5' % (d, x, x))
            a('v_add_f32_dpp v%d, v%d, v%d row_shr:4 row_mask:0xf bank_mask:0xa' % (d, y, y))
            pool.extend([x, y])
            return d
        qp = '[2,3,0,1]' if level == 3 else '[1,0,3,2]'
        msk = sM1 if level == 3 else sM0
        a('v_add_f32_dpp v%d, v%d, v%d quad_perm:%s row_mask:0xf bank_mask:0xf' % (x, x, x, qp))
        a('v_add_f32_dpp v%d, v%d, v%d quad_perm:%s row_mask:0xf bank_mask:0xf' % (y, y, y, qp))
        a('v_cndmask_b32_e64 v%d, v%d, v%d, %s' % (x, x, y, sr(msk, 2)))
        pool.append(y)
        return x

    def tree_step(gap, flush=False):
        for level in (4, 3, 2, 1):
            L = levels[level]
            while len(L) >= 2 and (flush or (L[0][1] < gap and L[1][1] < gap)):
                x = L.pop(0)[0]
                y = L.pop(0)[0]
                levels[level + 1].append((merge(level, x, y), gap))
                if not flush:
                    break

    for j in range(16):
        t0, t1 = 2 * j, 2 * j + 1
        x = pool.pop(0)
        y = pool.pop(0)
        for k in range(4):
            a('v_dot2_f32_bf16 v%d, v%d, v%d, %s' % (x, slot(t0) + k, vQ + k, '0' if k == 0 else 'v%d' % x))
            a('v_dot2_f32_bf16 v%d, v%d, v%d, %s' % (y, slot(t1) + k, vQ + k, '0' if k == 0 else 'v%d' % y))
        v_upto(min(cfg['nve'] + ((cfg['nvk'] - cfg['nve']) * (j + 1) + 15) // 16, 2 * j + 6))
        tree_step(j)
        a('v_permlane16_swap_b32 v%d, v%d' % (x, y))
        a('v_add_f32 v%d, v%d, v%d' % (x, x, y))
        pool.append(y)
        levels[1].append((x, j))
        if j in (0, 7):
            stamp('K pair %d' % j)
    for g in range(16, 24):
        tree_step(g)
    assert len(levels[5]) == 1 and not any(levels[l] for l in (1, 2, 3, 4)), levels
    vS = levels[5][0][0]
    stamp('K done')
    vM = 54
    vE, vTM = 28, 29

    rnd_bf16(30, vS)
    vS = 30
    a('v_mov_b32 v%d, v%d' % (vE, vS))
    allred('v_max_f32', vE, vTM)
    a('s_lshl_b32 s%d, s%d, 2' % (sT1, sW))
    a('s_add_u32 s%d, s%d, %d' % (sT1, sT1, MX))
    a('v_mov_b32 v%d, s%d' % (vT0, sT1))
    a('ds_write_b32 v%d, v%d' % (vT0, vE))

    a.c('h partial')
    for k in range(4):
        a('v_perm_b32 v%d, v%d, v%d, s%d' % (vU + 2 * k, vW1 + 4 + k, vW1 + k, sSELLO))
        a('v_perm_b32 v%d, v%d, v%d, s%d' % (vU + 2 * k + 1, vW1 + 4 + k, vW1 + k, sSELHI))
    for j in range(8):
        a('v_dot2_f32_bf16 v%d, v%d, v%d, 0' % (vW1 + j, vU + j, vXW1))
    for j in range(4):
        a('v_permlane16_swap_b32 v%d, v%d' % (vW1 + j, vW1 + j + 4))
    for j in range(4):
        a('v_add_f32 v%d, v%d, v%d' % (vW1 + j, vW1 + j, vW1 + j + 4))
    for j in range(2):
        a('v_add_f32_dpp v%d, v%d, v%d row_ror:8 row_mask:0xf bank_mask:0x3' % (vW1 + 4 + j, vW1 + j, vW1 + j))
        a('v_add_f32_dpp v%d, v%d, v%d row_ror:8 row_mask:0xf bank_mask:0xc' % (vW1 + 4 + j, vW1 + 2 + j, vW1 + 2 + j))
    a('v_add_f32_dpp v%d, v%d, v%d row_shl:4 row_mask:0xf bank_mask:0x5' % (vW1, vW1 + 4, vW1 + 4))
    a('v_add_f32_dpp v%d, v%d, v%d row_shr:4 row_mask:0xf bank_mask:0xa' % (vW1, vW1 + 5, vW1 + 5))
    a('v_add_f32_dpp v%d, v%d, v%d quad_perm:[2,3,0,1] row_mask:0xf bank_mask:0xf' % (vW1, vW1, vW1))
    a('v_add_f32_dpp v%d, v%d, v%d quad_perm:[1,0,3,2] row_mask:0xf bank_mask:0xf' % (vW1, vW1, vW1))
    a('s_lshl_b32 s%d, s%d, 6' % (sT1, sW))
    a('s_add_u32 s%d, s%d, %d' % (sT1, sT1, HB))
    a('v_and_b32 v%d, 0x3c, v%d' % (vT1, vL))
    a('v_add_u32 v%d, s%d, v%d' % (vT1, sT1, vT1))
    a('ds_write_b32 v%d, v%d' % (vT1, vW1))
    v_upto(cfg['nvb'])
    a('s_waitcnt lgkmcnt(0)')
    a('s_barrier')
    stamp('B2')

    a('v_mov_b32 v%d, %d' % (vT0, MX))
    a('ds_read_b128 %s, v%d' % (vr(vU, 4), vT0))
    a('ds_read_b128 %s, v%d offset:16' % (vr(vU + 4, 4), vT0))
    a('v_max3_f32 v%d, v%d, v%d, v%d' % (vM, vU, vU + 1, vU + 2))
    a('v_max3_f32 v%d, v%d, v%d, v%d' % (vM, vM, vU + 3, vU + 4))
    a('v_max3_f32 v%d, v%d, v%d, v%d' % (vM, vM, vU + 5, vU + 6))
    a('v_max_f32 v%d, v%d, v%d' % (vM, vM, vU + 7))
    CS = f2h(LOG2E / 16.0)
    a('v_sub_f32 v%d, v%d, v%d' % (vE, vS, vM))
    a('v_mul_f32 v%d, %s, v%d' % (vE, CS, vE))
    a('v_exp_f32 v%d, v%d' % (vE, vE))
    a('v_mov_b32 v%d, v%d' % (vS, vE))
    a('v_mov_b32 v%d, v%d' % (vTM, vE))
    a('v_permlane16_swap_b32 v%d, v%d' % (vS, vTM))
    a('v_cvt_pk_bf16_f32 v%d, v%d, v%d' % (vS, vS, vTM))

    def rev4(x):
        return ((x & 1) << 3) | ((x & 2) << 1) | ((x & 4) >> 1) | ((x & 8) >> 3)
    for u in range(16):
        a('ds_swizzle_b32 v%d, v%d offset:%d' % (vPP + u, vS, rev4(u) << 5))
    allred('v_add_f32', vE, vTM)
    a('s_lshl_b32 s%d, s%d, 2' % (sT1, sW))
    a('s_add_u32 s%d, s%d, %d' % (sT1, sT1, LW))
    a('v_mov_b32 v%d, s%d' % (vT0, sT1))
    a('ds_write_b32 v%d, v%d' % (vT0, vE))
    stamp('softmax done')

    vHP = vXW1
    vB2F = 24
    WP = [[None] * 8, [None] * 8]

    def do_gate():
        a.c('gate')
        ta, tb, tc, td = vU, vU + 1, vU + 2, vU + 3
        vZ = vU + 4
        a('s_mov_b32 s%d, 0x3f803f80' % sT2)
        for k in range(4):
            a('v_lshlrev_b32 v%d, 16, v%d' % (ta, vXG + k))
            a('v_lshlrev_b32 v%d, 16, v%d' % (tb, vGW + k))
            a('v_and_b32 v%d, 0xffff0000, v%d' % (tc, vXG + k))
            a('v_and_b32 v%d, 0xffff0000, v%d' % (td, vGW + k))
            a('v_mul_f32 v%d, v%d, v%d' % (ta, ta, tb))
            a('v_mul_f32 v%d, v%d, v%d' % (tc, tc, td))
            a('v_cvt_pk_bf16_f32 v%d, v%d, v%d' % (ta, ta, tc))
            a('v_dot2_f32_bf16 v%d, v%d, s%d, %s' % (vZ, ta, sT2, '0' if k == 0 else 'v%d' % vZ))
        allred('v_add_f32', vZ, ta)
        rnd_bf16(vZ, vZ)
        a('v_mul_f32 v%d, %s, v%d' % (vZ, f2h(-LOG2E), vZ))
        a('v_exp_f32 v%d, v%d' % (vZ, vZ))
        a('v_add_f32 v%d, 1.0, v%d' % (vZ, vZ))
        a('v_rcp_f32 v%d, v%d' % (vZ, vZ))
        rnd_bf16(vG, vZ)
        a('v_sub_f32 v%d, 1.0, v%d' % (vOMG, vG))
        rnd_bf16(vOMG, vOMG)

    def do_ffn1():
        a.c('ffn second layer partial')
        a('v_lshrrev_b32 v%d, 3, v%d' % (vT0, vL))
        a('v_lshlrev_b32 v%d, 3, v%d' % (vT0, vT0))
        hb = vW1
        regs = [vXG, vXG + 2, vXG + 4, vXG + 6, vW1, vW1 + 2, vW1 + 4]
        for k in range(7):
            a('ds_read_b64 %s, v%d offset:%d' % (vr(regs[k], 2), vT0, HB + 64 * k))
        for k in range(1, 7):
            for j in range(2):
                a('v_add_f32 v%d, v%d, v%d' % (regs[0] + j, regs[0] + j, regs[k] + j))
        h0, h1 = regs[0], regs[0] + 1
        t0_, t1_ = vU, vU + 1
        a('v_cvt_pk_bf16_f32 v%d, v%d, v%d' % (t0_, h0, h1))
        a('v_lshlrev_b32 v%d, 16, v%d' % (h0, t0_))
        a('v_and_b32 v%d, 0xffff0000, v%d' % (h1, t0_))
        a('v_lshlrev_b32 v%d, 16, v%d' % (t0_, vB1))
        a('v_and_b32 v%d, 0xffff0000, v%d' % (t1_, vB1))
        a('v_add_f32 v%d, v%d, v%d' % (h0, h0, t0_))
        a('v_add_f32 v%d, v%d, v%d' % (h1, h1, t1_))
        a('v_cvt_pk_bf16_f32 v%d, v%d, v%d' % (t0_, h0, h1))
        a('v_lshlrev_b32 v%d, 16, v%d' % (h0, t0_))
        a('v_and_b32 v%d, 0xffff0000, v%d' % (h1, t0_))
        C1 = -2.0 * LOG2E * 0.7978845608028654
        C2 = C1 * 0.044715
        a('s_mov_b32 s%d, %s' % (sT1, f2h(C2)))
        a('s_mov_b32 s%d, %s' % (sT2, f2h(C1)))
        for hh, tt in ((h0, t0_), (h1, t1_)):
            a('v_mul_f32 v%d, v%d, v%d' % (tt, hh, hh))
        for hh, tt in ((h0, t0_), (h1, t1_)):
            a('v_mul_f32 v%d, s%d, v%d' % (tt, sT1, tt))
        for hh, tt in ((h0, t0_), (h1, t1_)):
            a('v_add_f32 v%d, s%d, v%d' % (tt, sT2, tt))
        for hh, tt in ((h0, t0_), (h1, t1_)):
            a('v_mul_f32 v%d, v%d, v%d' % (tt, tt, hh))
        for hh, tt in ((h0, t0_), (h1, t1_)):
            a('v_exp_f32 v%d, v%d' % (tt, tt))
        for hh, tt in ((h0, t0_), (h1, t1_)):
            a('v_add_f32 v%d, 1.0, v%d' % (tt, tt))
        for hh, tt in ((h0, t0_), (h1, t1_)):
            a('v_rcp_f32 v%d, v%d' % (tt, tt))
        for hh, tt in ((h0, t0_), (h1, t1_)):
            a('v_mul_f32 v%d, v%d, v%d' % (hh, hh, tt))
        a('v_cvt_pk_bf16_f32 v%d, v%d, v%d' % (vHP, h0, h1))

    def do_ffn2():
        for k in range(4):
            a('v_perm_b32 v%d, v%d, v%d, s%d' % (vU + 2 * k, vW2 + 4 + k, vW2 + k, sSELLO))
            a('v_perm_b32 v%d, v%d, v%d, s%d' % (vU + 2 * k + 1, vW2 + 4 + k, vW2 + k, sSELHI))
        for j in range(8):
            a('v_dot2_f32_bf16 v%d, v%d, v%d, 0' % (vACCF + j, vU + j, vHP))
        a('s_nop 1')
        for j in range(8):
            a('v_mul_f32 v%d, v%d, v%d' % (vACCF + j, vACCF + j, vOMG))
        a('v_lshlrev_b32 v%d, 16, v%d' % (vB2F, vB2))
        a('v_and_b32 v%d, 0xffff0000, v%d' % (vB2F + 1, vB2))
        a('v_lshlrev_b32 v%d, 16, v%d' % (vB2F + 2, vB2 + 1))
        a('v_and_b32 v%d, 0xffff0000, v%d' % (vB2F + 3, vB2 + 1))
        for j in range(4):
            a('v_mul_f32 v%d, v%d, v%d' % (vB2F + j, vB2F + j, vOMG))

    def do_wop():
        a.c('wo pre-permute')
        spare = vW2
        for p in range(2):
            A, B = vWO + 8 * p, vWO + 8 * p + 4
            for k in range(4):
                a('v_perm_b32 v%d, v%d, v%d, s%d' % (spare, B + k, A + k, sSELLO))
                a('v_perm_b32 v%d, v%d, v%d, s%d' % (B + k, B + k, A + k, sSELHI))
                WP[p][2 * k] = spare
                WP[p][2 * k + 1] = B + k
                spare = A + k


    a.c('V phase')
    side = {0: do_gate, 1: do_ffn1, 2: do_ffn2, 3: do_wop}
    for u in range(16):
        v_upto(2 * u + cfg['win'])
        A, B = vslot(2 * u), vslot(2 * u + 1)
        for k in range(4):
            a('v_perm_b32 v%d, v%d, v%d, s%d' % (vU + 2 * k, B + k, A + k, sSELLO))
            a('v_perm_b32 v%d, v%d, v%d, s%d' % (vU + 2 * k + 1, B + k, A + k, sSELHI))
        for j in range(8):
            c = '0' if u == 0 else 'v%d' % (vACC + j)
            a('v_dot2_f32_bf16 v%d, v%d, v%d, %s' % (vACC + j, vU + j, vPP + u, c))
        if u in side:
            side[u]()
        if u == cfg['chk_u']:
            a('s_cmp_lg_u32 s%d, 7' % sW)
            a('s_cbranch_scc1 L_NOCHK')
            a('v_and_b32 v%d, 15, v%d' % (vT0, vL))
            a('s_lshl_b32 s%d, s%d, 4' % (sT1, sB))
            a('s_add_u32 s%d, s%d, %d' % (sT1, sT1, CNT // 4))
            a('v_add_u32 v%d, s%d, v%d' % (vT0, sT1, vT0))
            a('v_lshlrev_b32 v%d, 2, v%d' % (vSPARE, vT0))
            a('global_load_dword v%d, v%d, %s sc1' % (vCHK, vSPARE, sr(pDBG, 2)), optional=True)
            a.label('L_NOCHK')
        if u in (0, 7):
            stamp('V pair %d' % u)
    stamp('V done')
    for j in range(4):
        a('v_permlane32_swap_b32 v%d, v%d' % (vACC + j, vACC + j + 4))
    for j in range(4):
        a('v_add_f32 v%d, v%d, v%d' % (vR + j, vACC + j, vACC + j + 4))
    a('ds_write_b128 v%d, %s' % (vLOW, vr(vR, 4)))
    a('v_and_b32 v%d, 7, v%d' % (vT0, vL))
    a('v_lshlrev_b32 v%d, 2, v%d' % (vT0, vT0))
    a('s_waitcnt lgkmcnt(0)')
    a('s_barrier')
    stamp('B3')
    vO = 48
    a('ds_read_b128 %s, v%d' % (vr(vO, 4), vLOR))
    a('ds_read_b32 v%d, v%d offset:%d' % (vM + 1, vT0, LW))
    five = [vO, vO + 1, vO + 2, vO + 3, vM + 1]
    for ctl in ('quad_perm:[1,0,3,2]', 'quad_perm:[2,3,0,1]', 'row_half_mirror'):
        for r in five:
            a('v_add_f32_dpp v%d, v%d, v%d %s row_mask:0xf bank_mask:0xf' % (r, r, r, ctl))
    a('s_mov_b32 exec_lo, 0x01010101')
    a('s_mov_b32 exec_hi, 0x01010101')
    a('global_store_dwordx4 v%d, %s, %s sc1' % (vAO, vr(vO, 4), sr(pWS, 2)))
    a('s_mov_b64 exec, 1')
    a('global_store_dwordx2 v%d, %s, %s sc1' % (vAML, vr(vM, 2), sr(pWS, 2)))
    a('s_mov_b64 exec, -1')
    stamp('o published')
    if cfg['stop'] == 'pub':
        a('s_branch L_FIN')
    a('s_cmp_lg_u32 s%d, 7' % sW)
    a.save('w7')
    a('s_cbranch_scc1 L_YPART')
    a('v_cmp_ne_u32 vcc, 8, v%d' % vCHK)
    a.save('chk')
    a('s_cbranch_vccnz L_CHK_SLOW')
    a.label('L_CHK_OK')

    a.c('hop 1')
    a('s_mov_b32 s%d, %d' % (sSPIN, cfg['spin']))
    vPo, vPm = 64, 68
    a.label('L_POLL1')
    a('global_load_dwordx4 %s, v%d, %s sc1' % (vr(vPo, 4), vPO, sr(pWS, 2)))
    a('global_load_dwordx2 %s, v%d, %s sc1' % (vr(vPm, 2), vPML, sr(pWS, 2)))
    a('s_sub_u32 s%d, s%d, 1' % (sSPIN, sSPIN))
    a('s_cmp_eq_u32 s%d, 0' % sSPIN)
    a('s_waitcnt vmcnt(0)')
    a('s_cbranch_scc1 L_POLL1_DONE')
    a('v_max3_u32 v70, v64, v65, v66')
    a('v_max3_u32 v71, v67, v68, v69')
    a('v_max_u32 v70, v70, v71')
    a('v_cmp_eq_u32 vcc, -1, v70')
    a('s_cbranch_vccnz L_POLL1')
    a.label('L_POLL1_DONE')
    a('s_nop 0')
    stamp('hop1 data')
    m, l, Mx, w_, L_ = 68, 69, 70, 71, 72
    a('v_max_f32_dpp v%d, v%d, v%d quad_perm:[1,0,3,2] row_mask:0xf bank_mask:0xf' % (Mx, m, m))
    a('v_max_f32_dpp v%d, v%d, v%d quad_perm:[2,3,0,1] row_mask:0xf bank_mask:0xf' % (Mx, Mx, Mx))
    a('v_max_f32_dpp v%d, v%d, v%d row_half_mirror row_mask:0xf bank_mask:0xf' % (Mx, Mx, Mx))
    a('v_sub_f32 v%d, v%d, v%d' % (w_, m, Mx))
    a('v_mul_f32 v%d, %s, v%d' % (w_, CS, w_))
    a('v_exp_f32 v%d, v%d' % (w_, w_))
    a('v_mul_f32 v%d, v%d, v%d' % (L_, l, w_))
    for j in range(4):
        a('v_mul_f32 v%d, v%d, v%d' % (vPo + j, vPo + j, w_))
    five = [L_, vPo, vPo + 1, vPo + 2, vPo + 3]
    for ctl in ('quad_perm:[1,0,3,2]', 'quad_perm:[2,3,0,1]', 'row_half_mirror'):
        for r in five:
            a('v_add_f32_dpp v%d, v%d, v%d %s row_mask:0xf bank_mask:0xf' % (r, r, r, ctl))
    a('v_rcp_f32 v%d, v%d' % (L_, L_))
    a('v_mul_f32 v%d, v%d, v%d' % (L_, L_, vG))
    for j in range(4):
        a('v_mul_f32 v%d, v%d, v%d' % (vPo + j, vPo + j, L_))
    a('v_cvt_pk_bf16_f32 v74, v%d, v%d' % (vPo, vPo + 1))
    a('v_cvt_pk_bf16_f32 v75, v%d, v%d' % (vPo + 2, vPo + 3))
    a('v_lshrrev_b32 v%d, 3, v%d' % (vT0, vL))
    a('v_lshlrev_b32 v%d, 3, v%d' % (vT0, vT0))
    a('s_mov_b32 exec_lo, 0x01010101')
    a('s_mov_b32 exec_hi, 0x01010101')
    a('ds_write_b64 v%d, v[74:75] offset:%d' % (vT0, OCB))
    a('s_mov_b64 exec, -1')
    a('s_waitcnt lgkmcnt(0)')
    a('s_barrier')
    stamp('B4')
    a('s_cmp_ge_u32 s%d, 28' % sN)
    a('s_cbranch_scc1 L_FIN')
    a('s_mov_b32 s%d, %d' % (sSPIN, cfg['spin']))
    a('v_add_u32 v%d, 4096, v%d' % (vT0, vPY))
    a.label('L_POLL2')
    for k in range(8):
        a('global_load_dwordx4 %s, v%d, %s offset:%d sc1' % (vr(64 + 4 * k, 4), vPY if k < 4 else vT0, sr(pWS, 2), (k % 4) * 1024))
    a('s_sub_u32 s%d, s%d, 1' % (sSPIN, sSPIN))
    a('s_cmp_eq_u32 s%d, 0' % sSPIN)
    a('s_waitcnt vmcnt(0)')
    a('s_cbranch_scc1 L_POLL2_DONE')
    a('v_max3_u32 v100, v64, v65, v66')
    a('v_max3_u32 v101, v67, v68, v69')
    for k in range(70, 94, 4):
        a('v_max3_u32 v100, v100, v%d, v%d' % (k, k + 1))
        a('v_max3_u32 v101, v101, v%d, v%d' % (k + 2, k + 3))
    a('v_max3_u32 v100, v100, v94, v95')
    a('v_max_u32 v100, v100, v101')
    a('v_cmp_eq_u32 vcc, -1, v100')
    a('s_cbranch_vccnz L_POLL2')
    a.label('L_POLL2_DONE')
    a('s_nop 0')
    stamp('hop2 data')
    for step in (16, 8, 4):
        for base in range(64, 64 + step, 4):
            for j in range(4):
                a('v_add_f32 v%d, v%d, v%d' % (base + j, base + j, base + step + j))
    for n in (8, 4, 2, 1):
        for j in range(4):
            a('v_add_f32_dpp v%d, v%d, v%d row_ror:%d row_mask:0xf bank_mask:0xf' % (64 + j, 64 + j, 64 + j, n))
    for j in range(4):
        a('v_add_f32 v%d, v%d, v%d' % (64 + j, 64 + j, vB2F + j))
    a('v_cvt_pk_bf16_f32 v64, v64, v65')
    a('v_cvt_pk_bf16_f32 v65, v66, v67')
    if cfg['delay']:
        a('s_memrealtime s[94:95]')
        a('s_waitcnt lgkmcnt(0)')
        a('s_add_u32 s93, s94, %d' % cfg['delay'])
        a.label('L_DELAY')
        a('s_memrealtime s[94:95]')
        a('s_waitcnt lgkmcnt(0)')
        a('s_cmp_lt_u32 s94, s93')
        a('s_cbranch_scc1 L_DELAY')
    a('s_mul_i32 s%d, s%d, 896' % (sT1, sB))
    a('s_lshl_b32 s%d, s%d, 5' % (sT2, sN))
    a('s_add_u32 s%d, s%d, s%d' % (sT1, sT1, sT2))
    a('v_lshrrev_b32 v%d, 4, v%d' % (vT0, vL))
    a('v_lshl_add_u32 v%d, v%d, 3, s%d' % (vT0, vT0, sT1))
    a('s_mov_b32 exec_lo, 0x00010001')
    a('s_mov_b32 exec_hi, 0x00010001')
    a('global_store_dwordx2 v%d, v[64:65], %s' % (vT0, sr(pOUT, 2)))
    a('s_mov_b64 exec, -1')
    stamp('out stored')

    a('s_branch L_FIN')

    a.label('L_YPART')
    a.restore('w7')
    a('v_lshrrev_b32 v%d, 3, v%d' % (vT0, vL))
    a('v_lshlrev_b32 v%d, 3, v%d' % (vT0, vT0))
    a('s_barrier')
    a('ds_read_b64 v[74:75], v%d offset:%d' % (vT0, OCB))
    for j in range(8):
        a('v_dot2_f32_bf16 v%d, v%d, v74, v%d' % (vACCF + j, WP[0][j], vACCF + j))
    for j in range(8):
        a('v_dot2_f32_bf16 v%d, v%d, v75, v%d' % (vACCF + j, WP[1][j], vACCF + j))
    y = vACCF
    for j in range(4):
        a('v_permlane32_swap_b32 v%d, v%d' % (y + j, y + j + 4))
    for j in range(4):
        a('v_add_f32 v%d, v%d, v%d' % (y + j, y + j, y + j + 4))
    a('v_permlane16_swap_b32 v%d, v%d' % (y, y + 2))
    a('v_permlane16_swap_b32 v%d, v%d' % (y + 1, y + 3))
    a('v_add_f32 v%d, v%d, v%d' % (y, y, y + 2))
    a('v_add_f32 v%d, v%d, v%d' % (y + 1, y + 1, y + 3))
    a('v_add_f32_dpp v%d, v%d, v%d row_ror:8 row_mask:0xf bank_mask:0xf' % (y, y, y))
    a('v_add_f32_dpp v%d, v%d, v%d row_ror:8 row_mask:0xf bank_mask:0xf' % (y + 1, y + 1, y + 1))
    a('s_mov_b32 exec_lo, 0x00ff00ff')
    a('s_mov_b32 exec_hi, 0x00ff00ff')
    a('global_store_dwordx2 v%d, %s, %s sc1' % (vAY, vr(y, 2), sr(pWS, 2)))
    a('s_mov_b64 exec, -1')
    stamp('y published')

    a.label('L_FIN')
    if cfg['stamps']:
        a('s_nop 4')
        a('s_memrealtime s[100:101]')
        a('s_waitcnt lgkmcnt(0)')
        a('v_writelane_b32 v31, s100, 63')
        a('s_lshl_b32 s94, s2, 3')
        a('s_add_u32 s94, s94, s%d' % sW)
        a('s_lshl_b32 s94, s94, 8')
        a('s_add_u32 s94, s94, %d' % STREG)
        a('v_lshl_add_u32 v30, v%d, 2, s94' % vL)
        a('global_store_dword v30, v31, %s' % sr(pWS, 2))
        if cfg['dbgtime']:
            sel = cfg['dbgtime']
            a('s_add_u32 s94, s%d, 1' % sW)
            a('s_and_b32 s94, s94, 7')
            a('s_cmp_gt_u32 s94, 1')
            a('s_cbranch_scc1 L_NODBG')
            a('v_mov_b32 v29, 0')
            for i, nm in enumerate(sel):
                src = stamp_ids[nm] if nm != 'end' else 63
                a('v_readlane_b32 s94, v31, %d' % src)
                if i == 0:
                    a('s_not_b32 s94, s94')
                a('s_nop 3')
                a('v_writelane_b32 v29, s94, %d' % i)
            a('v_lshlrev_b32 v28, 2, v%d' % vL)
            a('s_mov_b64 exec, 0xffff')
            a('global_atomic_umax v28, v29, %s' % sr(pDBG, 2))
            a('s_mov_b64 exec, -1')
            a.label('L_NODBG')
    a('s_endpgm')

    a.label('L_CHK_SLOW')
    a.restore('chk')
    a('s_mov_b32 s%d, %d' % (sSPIN, cfg['spin']))
    a.label('L_CHK_LOOP')
    a('global_load_dword v%d, v%d, %s sc1' % (vCHK, vSPARE, sr(pDBG, 2)))
    a('s_sub_u32 s%d, s%d, 1' % (sSPIN, sSPIN))
    a('s_cmp_eq_u32 s%d, 0' % sSPIN)
    a('s_waitcnt vmcnt(0)')
    a('s_cbranch_scc1 L_CHK_OK')
    a('v_cmp_ne_u32 vcc, 8, v%d' % vCHK)
    a('s_cbranch_vccnz L_CHK_LOOP')
    a('s_branch L_CHK_OK')
    a.label('L_END')
    body = a.finalize()
    return body


HEADER = open('cdna_kernels/%s.s.ref' % NAME).read().split('; Override launch geometry')[0]


def wrap(body, cfg):
    s = HEADER
    s += '; Override launch geometry by editing the next line (default: block=256,\n'
    s += '; grid=ceil(out_elems/256), lds=0). Harness parses it; keep it on one line.\n'
    s += '; @launch grid=(256,1,1) block=(512,1,1) lds=%d\n' % LDS_BYTES
    s += '.amdgcn_target "amdgcn-amd-amdhsa--gfx950"\n.text\n.globl %s_kernel\n.p2align 8\n' % NAME
    s += '.type %s_kernel,@function\n%s_kernel:\n' % (NAME, NAME)
    s += body
    s += 's_endpgm\n'
    s += '.section .rodata,"a"\n.p2align 6\n.amdhsa_kernel %s_kernel\n' % NAME
    s += '  .amdhsa_next_free_vgpr 256\n  .amdhsa_next_free_sgpr 102\n  .amdhsa_accum_offset 256\n'
    s += '  .amdhsa_group_segment_fixed_size 0\n  .amdhsa_kernarg_size 112\n  .amdhsa_user_sgpr_count 2\n'
    s += '  .amdhsa_user_sgpr_kernarg_segment_ptr 1\n  .amdhsa_system_sgpr_workgroup_id_x 1\n.end_amdhsa_kernel\n'
    return s


def build(out, **kw):
    cfg = dict(DEFAULT)
    cfg.update(kw)
    s = wrap(gen(cfg), cfg)
    open(out, 'w').write(s)
    return s


if __name__ == '__main__':
    out = sys.argv[1] if len(sys.argv) > 1 else 'cdna_kernels/%s.s' % NAME
    kw = {}
    for arg in sys.argv[2:]:
        k, v = arg.split('=')
        kw[k] = eval(v)
    build(out, **kw)
    print('wrote', out)
```

```python
import sys
from asmlib import Asm

NAME = 'gated_mix__mha_block_cached__dense_activation_gelu__decode'

DEFAULT = dict(
    nt_kv=True,
    nt_w='q12ox',
    gran=4,
    kpre=16,
    nve=4,
    nvk=8,
    nvb=10,
    win=12,
    skip7=True,
    dbgtime=False,
    delay=0,
    delay_abs=0,
    empty=False,
    stop=None,
    stamps=False,
    chk_u=4,
    spin=20000,
)

sXCD, sH, sB, sC, sW, sN = 3, 4, 5, 6, 7, 8
sR, sR1, sLI, sSL, sVAL, sW6 = 9, 10, 11, 12, 13, 14
sT0 = 15
pX, pK, pV, pWQ, pWO, pW1, pB1 = 16, 18, 20, 22, 24, 28, 30
pW2, pB2, pG, pOUT, pDBG, pWS = 32, 34, 36, 38, 40, 42
rK, rV, rWQ, rX, rW1, rW2, rWO, rG, rB1, rB2 = 44, 48, 52, 56, 60, 64, 68, 72, 76, 80
sSELLO, sSELHI = 84, 85
sOFF = 86
sWQO = 93
sT1, sT2 = 94, 95
sKVO = 26
sM1 = 96
sM0 = 98
sSPIN = 100
sSTAMP = 101

vL = 0
vO16 = 1
vWQ = 2
vAO = 3
vAML = 4
vAY = 5
vPO = 6
vPML = 7
vPY = 8
vLQW = 9
vLOW = 10
vLB = 11
vLOR = 12
vT0, vT1, vT2 = 13, 14, 15
vXQ = 16
vACCF = 16
vACC = 32
vQ = 40
vR = 44
vT = 48
vU = 56
RING = 64
XR = 192
vPP = 176
VE = 240
vW1, vW2, vWO = 192, 200, 208
vXG, vGW, vXW1, vB1, vB2, vCHK = 224, 228, 232, 233, 234, 236
vG, vOMG = 237, 238
vSPARE = 239

QBUF, OBUF, OSTR = 0, 8192, 1040
MX, LW, HB, OCB = 16640, 16672, 16704, 17216
LDS_BYTES = 17408

OREG = 0
YREG = 0x80000
YB = 32 * 8192
STREG = 0x200000
CNT = 128

LOG2E = 1.4426950408889634


def f2h(x):
    import struct
    return '0x%08x' % struct.unpack('<I', struct.pack('<f', x))[0]


def slot(t):
    return RING + 4 * t


def vslot(t):
    return VE + 4 * t if t < 4 else RING + 4 * (t - 4)


def vr(a, n):
    return 'v[%d:%d]' % (a, a + n - 1)


def sr(a, n):
    return 's[%d:%d]' % (a, a + n - 1)


def gen(cfg):
    a = Asm()
    NT = ' nt' if cfg['nt_kv'] else ''
    NWQ, NW1, NW2, NWO, NW = [' nt' if ch in cfg['nt_w'] else '' for ch in 'q12ox']
    gran = cfg['gran']

    def kvoff(t):
        return (t // gran) * gran * 8192 + (t % gran) * 1024
    nstamp = [0]
    stamp_ids = {}

    def stamp(name):
        if not cfg['stamps']:
            return
        i = nstamp[0]
        nstamp[0] += 1
        stamp_ids[name] = i
        a.c('stamp %d %s' % (i, name))
        a('s_memrealtime s[100:101]')
        a('s_waitcnt lgkmcnt(0)')
        a('v_writelane_b32 v31, s100, %d' % i)

    def srd(r, base, off_sgpr, nrec):
        if off_sgpr is None:
            a('s_mov_b32 s%d, s%d' % (r, base))
            a('s_mov_b32 s%d, s%d' % (r + 1, base + 1))
        else:
            a('s_add_u32 s%d, s%d, s%d' % (r, base, off_sgpr))
            a('s_addc_u32 s%d, s%d, 0' % (r + 1, base + 1))
        a('s_mov_b32 s%d, %s' % (r + 2, nrec))
        a('s_mov_b32 s%d, 0x00020000' % (r + 3))

    def kv_load(rs, t):
        reg = slot(t) if rs == rK else vslot(t)
        if gran >= 4:
            so = '0' if t < 4 else 's%d' % (sOFF + t // 4 - 1)
            off = (t % 4) * 1024
        else:
            off = 0
            so = '0'
            if t > 0:
                a('s_mov_b32 s%d, %d' % (sKVO, kvoff(t)))
                so = 's%d' % sKVO
        a('buffer_load_dwordx4 %s, v%d, %s, %s offen offset:%d%s' % (vr(reg, 4), vO16, sr(rs, 4), so, off, NT))

    vissued = [0]

    def v_upto(n):
        n = min(n, 32)
        while vissued[0] < n:
            kv_load(rV, vissued[0])
            vissued[0] += 1

    def allred(op, reg, tmp):
        for n in (8, 4, 2, 1):
            a('%s_dpp v%d, v%d, v%d row_ror:%d row_mask:0xf bank_mask:0xf' % (op, reg, reg, reg, n))
        a('v_mov_b32 v%d, v%d' % (tmp, reg))
        a('v_permlane16_swap_b32 v%d, v%d' % (reg, tmp))
        a('%s v%d, v%d, v%d' % (op, reg, reg, tmp))
        a('v_mov_b32 v%d, v%d' % (tmp, reg))
        a('v_permlane32_swap_b32 v%d, v%d' % (reg, tmp))
        a('%s v%d, v%d, v%d' % (op, reg, reg, tmp))

    def rnd_bf16(dst, src):
        a('v_cvt_pk_bf16_f32 v%d, v%d, v%d' % (dst, src, src))
        a('v_and_b32 v%d, 0xffff0000, v%d' % (dst, dst))

    a('s_cmp_ge_u32 s2, %d' % (0 if cfg['empty'] else 256))
    a('s_cbranch_scc1 L_END')
    a('s_load_dwordx16 s[16:31], s[0:1], 0')
    a('s_load_dwordx8 s[32:39], s[0:1], 64')
    a('s_load_dwordx4 s[40:43], s[0:1], 96')
    if cfg['stamps']:
        a('v_mov_b32 v31, 0')
    a('v_lshrrev_b32 v%d, 6, v0' % vT0)
    a('v_and_b32 v%d, 63, v0' % vL)
    a('v_readfirstlane_b32 s%d, v%d' % (sW, vT0))
    a('s_and_b32 s%d, s2, 7' % sXCD)
    a('s_lshr_b32 s%d, s2, 3' % sR)
    a('s_and_b32 s%d, s%d, 1' % (sR1, sR))
    a('s_lshl_b32 s%d, s%d, 3' % (sLI, sR1))
    a('s_add_u32 s%d, s%d, s%d' % (sH, sLI, sXCD))
    a('s_lshr_b32 s%d, s%d, 1' % (sB, sR))
    a('s_and_b32 s%d, s%d, 1' % (sB, sB))
    a('s_lshr_b32 s%d, s%d, 2' % (sC, sR))
    a('s_lshl_b32 s%d, s%d, 4' % (sN, sC))
    a('s_add_u32 s%d, s%d, s%d' % (sN, sN, sH))
    a('s_add_u32 s%d, s%d, s%d' % (sLI, sLI, sC))
    a('s_mul_i32 s%d, s%d, 14' % (sSL, sXCD))
    a('s_add_u32 s%d, s%d, s%d' % (sSL, sSL, sLI))
    a('s_cmp_lt_u32 s%d, 14' % sLI)
    a('s_cselect_b32 s%d, s%d, 0' % (sSL, sSL))
    a('s_cselect_b32 s%d, -1, 0' % sVAL)
    a('s_min_u32 s%d, s%d, 6' % (sW6, sW))
    a('s_mov_b32 s%d, 0x05040100' % sSELLO)
    a('s_mov_b32 s%d, 0x07060302' % sSELHI)
    if gran >= 4:
        for j in range(1, 8):
            a('s_mov_b32 s%d, %d' % (sOFF + j - 1, kvoff(4 * j)))
    a('v_lshlrev_b32 v%d, 4, v%d' % (vO16, vL))
    a('v_lshrrev_b32 v%d, 5, v%d' % (vT0, vL))
    a('v_and_b32 v%d, 31, v%d' % (vT1, vL))
    a('v_mul_u32_u24 v%d, 0x38000, v%d' % (vWQ, vT0))
    a('v_lshl_add_u32 v%d, v%d, 4, v%d' % (vWQ, vT1, vWQ))
    a('v_lshlrev_b32 v%d, 4, v%d' % (vLB, vT0))
    a('v_lshl_add_u32 v%d, v%d, 5, v%d' % (vLB, vT1, vLB))
    a('v_mul_u32_u24 v%d, 56, v%d' % (vT2, vT0))
    a('s_lshl_b32 s%d, s%d, 4' % (sT0, sB))
    a('s_add_u32 s%d, s%d, s%d' % (sT0, sT0, sH))
    a('s_lshl_b32 s%d, s%d, 21' % (sT1, sT0))
    a('s_lshl_b32 s%d, s%d, 18' % (sT2, sC))
    a('s_add_u32 s%d, s%d, s%d' % (sT1, sT1, sT2))
    a('s_mul_i32 s%d, s%d, %d' % (sT2, sW, gran * 1024))
    a('s_add_u32 s%d, s%d, s%d' % (sT1, sT1, sT2))
    stamp('entry')
    if cfg['delay_abs']:
        a('s_memrealtime s[94:95]')
    a('s_waitcnt lgkmcnt(0)')
    if cfg['delay_abs']:
        a('s_mov_b32 s101, s94')
    stamp('kernarg')
    a('s_mul_i32 s%d, s%d, 896' % (sT2, sB))
    srd(rX, pX, sT2, '896')
    srd(rK, pK, sT1, str(kvoff(31) + 1024))
    srd(rV, pV, sT1, str(kvoff(31) + 1024))
    a('s_mul_i32 s%d, s%d, 112' % (sT2, sW))
    for k in range(3):
        a('buffer_load_dwordx4 %s, v%d, %s, s%d offen offset:%d%s' % (vr(vXQ + 4 * k, 4), vT2, sr(rX, 4), sT2, 16 * k, NW))
    a('buffer_load_dwordx2 %s, v%d, %s, s%d offen offset:48%s' % (vr(vXQ + 12, 2), vT2, sr(rX, 4), sT2, NW))
    a.c('sentinel clears (wave 0)')
    a('s_cmp_lg_u32 s%d, 0' % sW)
    a('s_cbranch_scc1 L_NOCLR')
    for k in range(4):
        a('v_mov_b32 v%d, -1' % (vR + k))
    a('s_lshl_b32 s%d, s%d, 14' % (sT1, sT0))
    a('s_lshl_b32 s%d, s%d, 7' % (sT2, sC))
    a('s_add_u32 s%d, s%d, s%d' % (sT2, sT2, sT1))
    a('v_lshrrev_b32 v48, 3, v%d' % vL)
    a('v_and_b32 v49, 7, v%d' % vL)
    a('v_lshlrev_b32 v48, 11, v48')
    a('v_lshl_add_u32 v48, v49, 4, v48')
    a('v_add_u32 v48, s%d, v48' % sT2)
    a('global_store_dwordx4 v48, %s, %s sc1' % (vr(vR, 4), sr(pWS, 2)), tag='clr', optional=True)
    a('s_lshl_b32 s%d, s%d, 3' % (sT2, sC))
    a('s_add_u32 s%d, s%d, s%d' % (sT2, sT2, sT1))
    a('s_add_u32 s%d, s%d, 1024' % (sT2, sT2))
    a('v_lshl_add_u32 v50, v%d, 11, s%d' % (vL, sT2))
    a('s_mov_b64 exec, 0xff')
    a('global_store_dwordx2 v50, %s, %s sc1' % (vr(vR, 2), sr(pWS, 2)), tag='clr', optional=True)
    a('s_mov_b64 exec, -1')
    a('s_mul_i32 s%d, s%d, %d' % (sT1, sB, YB))
    a('s_lshl_b32 s%d, s%d, 6' % (sT2, sN))
    a('s_add_u32 s%d, s%d, s%d' % (sT1, sT1, sT2))
    a('s_add_u32 s%d, s%d, %d' % (sT1, sT1, YREG))
    a('v_lshrrev_b32 v51, 2, v%d' % vL)
    a('v_and_b32 v52, 3, v%d' % vL)
    a('v_lshlrev_b32 v51, 13, v51')
    a('v_lshl_add_u32 v51, v52, 4, v51')
    a('v_add_u32 v51, s%d, v51' % sT1)
    a('v_add_u32 v52, 0x20000, v51')
    a('global_store_dwordx4 v51, %s, %s sc1' % (vr(vR, 4), sr(pWS, 2)), tag='clr', optional=True)
    a('s_mov_b32 exec_hi, 0xffff')
    a('global_store_dwordx4 v52, %s, %s sc1' % (vr(vR, 4), sr(pWS, 2)), tag='clr', optional=True)
    a('s_mov_b64 exec, -1')
    a.label('L_NOCLR')
    a('s_mul_i32 s%d, s%d, %d' % (sT1, sW, 56 * 8192))
    a('s_lshl_b32 s%d, s%d, 9' % (sT2, sH))
    a('s_add_u32 s%d, s%d, s%d' % (sT1, sT1, sT2))
    srd(rWQ, pWQ, sT1, '451072')

    def wq_regs(u):
        if u < 8:
            return slot(16 + 2 * u), slot(17 + 2 * u)
        return XR + 8 * (u - 8), XR + 8 * (u - 8) + 4

    kpre = cfg['kpre']
    kq = list(range(kpre))
    for u in range(14):
        if kq:
            kv_load(rK, kq.pop(0))
        A, B = wq_regs(u)
        for j, r in enumerate((A, B)):
            row = 2 * u + j
            if row == 0:
                a('buffer_load_dwordx4 %s, v%d, %s, 0 offen%s' % (vr(r, 4), vWQ, sr(rWQ, 4), NWQ))
            else:
                a('s_mov_b32 s%d, %d' % (sWQO, row * 8192))
                a('buffer_load_dwordx4 %s, v%d, %s, s%d offen%s' % (vr(r, 4), vWQ, sr(rWQ, 4), sWQO, NWQ))
    while kq:
        kv_load(rK, kq.pop(0))
    stamp('prologue issued')

    a.c('hand-off addresses')
    a('s_lshl_b32 s%d, s%d, 3' % (sT1, sT0))
    a('s_add_u32 s%d, s%d, s%d' % (sT2, sT1, sW))
    a('s_lshl_b32 s%d, s%d, 11' % (sT2, sT2))
    a('s_lshl_b32 s%d, s%d, 7' % (sWQO, sC))
    a('s_add_u32 s%d, s%d, s%d' % (sWQO, sWQO, sT2))
    a('v_lshrrev_b32 v%d, 3, v%d' % (vT0, vL))
    a('v_and_b32 v%d, 7, v%d' % (vT1, vL))
    a('v_lshl_add_u32 v%d, v%d, 4, s%d' % (vAO, vT0, sWQO))
    a('s_lshl_b32 s%d, s%d, 3' % (sWQO, sC))
    a('s_add_u32 s%d, s%d, s%d' % (sWQO, sWQO, sT2))
    a('s_add_u32 s%d, s%d, 1024' % (sWQO, sWQO))
    a('v_mov_b32 v%d, s%d' % (vAML, sWQO))
    a('s_add_u32 s%d, s%d, s%d' % (sT2, sT1, sC))
    a('s_lshl_b32 s%d, s%d, 11' % (sT2, sT2))
    a('v_lshlrev_b32 v%d, 7, v%d' % (vPO, vT1))
    a('v_lshl_add_u32 v%d, v%d, 4, v%d' % (vPO, vT0, vPO))
    a('v_add_u32 v%d, s%d, v%d' % (vPO, sT2, vPO))
    a('s_add_u32 s%d, s%d, 1024' % (sT2, sT2))
    a('v_lshl_add_u32 v%d, v%d, 3, s%d' % (vPML, vT1, sT2))
    a('s_mul_i32 s%d, s%d, %d' % (sT1, sB, YB))
    a('s_add_u32 s%d, s%d, %d' % (sT1, sT1, YREG))
    a('s_lshl_b32 s%d, s%d, 15' % (sT2, sW))
    a('s_add_u32 s%d, s%d, s%d' % (sT2, sT2, sT1))
    a('s_lshl_b32 s%d, s%d, 6' % (sWQO, sN))
    a('s_add_u32 s%d, s%d, s%d' % (sT2, sT2, sWQO))
    a('v_lshrrev_b32 v%d, 1, v%d' % (vT2, vT1))
    a('v_lshlrev_b32 v%d, 13, v%d' % (vAY, vT2))
    a('v_and_b32 v%d, 1, v%d' % (vT2, vL))
    a('v_lshl_add_u32 v%d, v%d, 5, v%d' % (vAY, vT2, vAY))
    a('v_lshrrev_b32 v%d, 5, v%d' % (vT2, vL))
    a('v_lshl_add_u32 v%d, v%d, 4, v%d' % (vAY, vT2, vAY))
    a('v_bfe_u32 v%d, v%d, 4, 1' % (vT2, vL))
    a('v_lshl_add_u32 v%d, v%d, 3, v%d' % (vAY, vT2, vAY))
    a('v_add_u32 v%d, s%d, v%d' % (vAY, sT2, vAY))
    a('s_min_u32 s%d, s%d, 27' % (sT2, sN))
    a('s_lshl_b32 s%d, s%d, 13' % (sT2, sT2))
    a('s_add_u32 s%d, s%d, s%d' % (sT2, sT2, sT1))
    a('v_and_b32 v%d, 15, v%d' % (vT2, vL))
    a('v_lshlrev_b32 v%d, 6, v%d' % (vPY, vT2))
    a('v_lshrrev_b32 v%d, 4, v%d' % (vT2, vL))
    a('v_lshl_add_u32 v%d, v%d, 4, v%d' % (vPY, vT2, vPY))
    a('v_add_u32 v%d, s%d, v%d' % (vPY, sT2, vPY))
    a('s_lshl_b32 s%d, s%d, 10' % (sT1, sW))
    a('v_add_u32 v%d, s%d, v%d' % (vLQW, sT1, vLB))
    a('s_mul_i32 s%d, s%d, %d' % (sT1, sW, OSTR))
    a('s_add_u32 s%d, s%d, %d' % (sT1, sT1, OBUF))
    a('v_add_u32 v%d, s%d, v%d' % (vLOW, sT1, vLB))
    a('v_mul_u32_u24 v%d, %d, v%d' % (vLOR, OSTR, vT1))
    a('v_lshl_add_u32 v%d, v%d, 4, v%d' % (vLOR, vT0, vLOR))
    a('s_lshl_b32 s%d, s%d, 7' % (sT1, sW))
    a('s_add_u32 s%d, s%d, %d' % (sT1, sT1, OBUF))
    a('v_add_u32 v%d, s%d, v%d' % (vLOR, sT1, vLOR))
    a('s_mov_b32 s%d, 0xcccccccc' % sM1)
    a('s_mov_b32 s%d, 0xcccccccc' % (sM1 + 1))
    a('s_mov_b32 s%d, 0xaaaaaaaa' % sM0)
    a('s_mov_b32 s%d, 0xaaaaaaaa' % (sM0 + 1))

    a.c('q phase')
    knext = kpre
    for u in range(14):
        A, B = wq_regs(u)
        for k in range(4):
            a('v_perm_b32 v%d, v%d, v%d, s%d' % (vT + 2 * k, B + k, A + k, sSELLO))
            a('v_perm_b32 v%d, v%d, v%d, s%d' % (vT + 2 * k + 1, B + k, A + k, sSELHI))
        if u == 0:
            stamp('first wq pair')
            a.save('flag')
            a('s_cmp_lg_u32 s%d, 0' % sW)
            a('s_cbranch_scc1 L_NOFLAG')
            a('s_lshl_b32 s%d, s%d, 2' % (sT1, sT0))
            a('s_add_u32 s%d, s%d, %d' % (sT1, sT1, CNT))
            a('v_mov_b32 v%d, s%d' % (vT0, sT1))
            a('v_mov_b32 v%d, 1' % vT1)
            a.wait_tag('clr')
            a('s_mov_b64 exec, 1')
            a('global_atomic_add v%d, v%d, %s' % (vT0, vT1, sr(pDBG, 2)), optional=True)
            a('s_mov_b64 exec, -1')
            a.label('L_NOFLAG')
            a.restore('flag')
        lim = 16 + 2 * u + 2 if u < 8 else 32
        while knext < min(lim, 32) and (knext < 16 or u >= (knext - 16) // 2):
            kv_load(rK, knext)
            knext += 1
        for j in range(8):
            c = '0' if u == 0 else 'v%d' % (vACC + j)
            a('v_dot2_f32_bf16 v%d, v%d, v%d, %s' % (vACC + j, vT + j, vXQ + u, c))
    assert knext == 32
    stamp('q dots done')
    for j in range(4):
        a('v_permlane32_swap_b32 v%d, v%d' % (vACC + j, vACC + j + 4))
    for j in range(4):
        a('v_add_f32 v%d, v%d, v%d' % (vR + j, vACC + j, vACC + j + 4))
    a('ds_write_b128 v%d, %s' % (vLQW, vr(vR, 4)))
    v_upto(cfg['nve'])
    a('s_waitcnt lgkmcnt(0)')
    a('s_barrier')
    stamp('B1')
    for k in range(8):
        a('ds_read_b128 %s, v%d offset:%d' % (vr(XR + 4 * k, 4), vLB, QBUF + k * 1024))
    for k in range(1, 8):
        for j in range(4):
            a('v_add_f32 v%d, v%d, v%d' % (XR + j, XR + j, XR + 4 * k + j))
    a('v_cvt_pk_bf16_f32 v%d, v%d, v%d' % (vQ, XR, XR + 1))
    a('v_cvt_pk_bf16_f32 v%d, v%d, v%d' % (vQ + 1, XR + 2, XR + 3))
    a('v_mov_b32 v%d, v%d' % (vQ + 2, vQ))
    a('v_mov_b32 v%d, v%d' % (vQ + 3, vQ + 1))
    a('v_permlane32_swap_b32 v%d, v%d' % (vQ, vQ + 2))
    a('v_permlane32_swap_b32 v%d, v%d' % (vQ + 1, vQ + 3))
    stamp('q ready')

    def small_loads():
        a.c('w1 / w2 / wo / gate / bias loads')
        a('s_mul_i32 s%d, s%d, %d' % (sT1, sW6, 64 * 3584))
        a('s_lshl_b32 s%d, s%d, 5' % (sT2, sSL))
        a('s_add_u32 s%d, s%d, s%d' % (sT1, sT1, sT2))
        if cfg['skip7']:
            a('s_cmp_eq_u32 s%d, 7' % sW)
            a('s_cselect_b32 s%d, 0, s%d' % (sKVO + 1, sVAL))
        else:
            a('s_mov_b32 s%d, s%d' % (sKVO + 1, sVAL))
        a('s_and_b32 s%d, s%d, %d' % (sWQO, sKVO + 1, 63 * 3584 + 32))
        srd(rW1, pW1, sT1, 's%d' % sWQO)
        a('s_and_b32 s%d, s%d, 32' % (sWQO, sVAL))
        srd(rB1, pB1, sT2, 's%d' % sWQO)
        a('s_mul_i32 s%d, s%d, %d' % (sT1, sSL, 16 * 896))
        a('s_lshl_b32 s%d, s%d, 7' % (sT2, sW6))
        a('s_add_u32 s%d, s%d, s%d' % (sT1, sT1, sT2))
        a('s_and_b32 s%d, s%d, %d' % (sWQO, sKVO + 1, 15 * 896 + 128))
        srd(rW2, pW2, sT1, 's%d' % sWQO)
        a('s_lshl_b32 s%d, s%d, 8' % (sT1, sH))
        a('s_lshl_b32 s%d, s%d, 5' % (sWQO, sC))
        a('s_add_u32 s%d, s%d, s%d' % (sT1, sT1, sWQO))
        a('s_mul_i32 s%d, s%d, 896' % (sT1, sT1))
        a('s_add_u32 s%d, s%d, s%d' % (sT1, sT1, sT2))
        if cfg['skip7']:
            a('s_cmp_eq_u32 s%d, 7' % sW)
            a('s_cselect_b32 s%d, 0, %d' % (sWQO, 31 * 896 + 128))
            srd(rWO, pWO, sT1, 's%d' % sWQO)
        else:
            srd(rWO, pWO, sT1, str(31 * 896 + 128))
        srd(rG, pG, None, '896')
        srd(rB2, pB2, None, '896')
        a('v_and_b32 v%d, 31, v%d' % (vT0, vL))
        a('v_mul_u32_u24 v%d, 7168, v%d' % (vT1, vT0))
        a('v_lshrrev_b32 v%d, 5, v%d' % (vT2, vL))
        a('v_lshl_add_u32 v%d, v%d, 4, v%d' % (vT1, vT2, vT1))
        a('buffer_load_dwordx4 %s, v%d, %s, 0 offen%s' % (vr(vW1, 4), vT1, sr(rW1, 4), NW1))
        a('buffer_load_dwordx4 %s, v%d, %s, 0 offen offset:3584%s' % (vr(vW1 + 4, 4), vT1, sr(rW1, 4), NW1))
        a('v_lshlrev_b32 v%d, 2, v%d' % (vT0, vT0))
        a('buffer_load_dword v%d, v%d, %s, s%d offen%s' % (vXW1, vT0, sr(rX, 4), sT2, NW))
        a('buffer_load_dwordx4 %s, v%d, %s, 0 offen%s' % (vr(vXG, 4), vO16, sr(rX, 4), NW))
        a('buffer_load_dwordx4 %s, v%d, %s, 0 offen%s' % (vr(vGW, 4), vO16, sr(rG, 4), NW))
        a('v_lshrrev_b32 v%d, 3, v%d' % (vT0, vL))
        a('v_and_b32 v%d, 7, v%d' % (vT1, vL))
        a('v_lshlrev_b32 v%d, 4, v%d' % (vT1, vT1))
        a('v_lshlrev_b32 v%d, 2, v%d' % (vT2, vT0))
        a('buffer_load_dword v%d, v%d, %s, 0 offen%s' % (vB1, vT2, sr(rB1, 4), NW))
        a('v_mul_u32_u24 v%d, 1792, v%d' % (vT2, vT0))
        a('v_add_u32 v%d, v%d, v%d' % (vT2, vT2, vT1))
        a('buffer_load_dwordx4 %s, v%d, %s, 0 offen%s' % (vr(vW2, 4), vT2, sr(rW2, 4), NW2))
        a('buffer_load_dwordx4 %s, v%d, %s, 0 offen offset:896%s' % (vr(vW2 + 4, 4), vT2, sr(rW2, 4), NW2))
        a('v_mul_u32_u24 v%d, 3584, v%d' % (vT2, vT0))
        a('v_add_u32 v%d, v%d, v%d' % (vT2, vT2, vT1))
        for k in range(4):
            a('buffer_load_dwordx4 %s, v%d, %s, 0 offen offset:%d%s' % (vr(vWO + 4 * k, 4), vT2, sr(rWO, 4), 896 * k, NWO))
        a('s_min_u32 s%d, s%d, 27' % (sT1, sN))
        a('s_lshl_b32 s%d, s%d, 5' % (sT1, sT1))
        a('v_lshrrev_b32 v%d, 4, v%d' % (vT0, vL))
        a('v_lshlrev_b32 v%d, 3, v%d' % (vT0, vT0))
        a('buffer_load_dwordx2 %s, v%d, %s, s%d offen%s' % (vr(vB2, 2), vT0, sr(rB2, 4), sT1, NW))

    small_loads()

    a.c('K phase')
    pool = [24, 25, 26, 27, 28, 29, 30, 56, 57, 58, 59, 60, 61, 62, 63, 48, 49, 50, 51, 52, 53, 54, 55]
    if not cfg['stamps']:
        pool.append(31)
    levels = {1: [], 2: [], 3: [], 4: [], 5: []}

    def merge(level, x, y):
        if level == 1:
            d = pool.pop(0)
            a('v_add_f32_dpp v%d, v%d, v%d row_ror:8 row_mask:0xf bank_mask:0x3' % (d, x, x))
            a('v_add_f32_dpp v%d, v%d, v%d row_ror:8 row_mask:0xf bank_mask:0xc' % (d, y, y))
            pool.extend([x, y])
            return d
        if level == 2:
            d = pool.pop(0)
            a('v_add_f32_dpp v%d, v%d, v%d row_shl:4 row_mask:0xf bank_mask:0x5' % (d, x, x))
            a('v_add_f32_dpp v%d, v%d, v%d row_shr:4 row_mask:0xf bank_mask:0xa' % (d, y, y))
            pool.extend([x, y])
            return d
        qp = '[2,3,0,1]' if level == 3 else '[1,0,3,2]'
        msk = sM1 if level == 3 else sM0
        a('v_add_f32_dpp v%d, v%d, v%d quad_perm:%s row_mask:0xf bank_mask:0xf' % (x, x, x, qp))
        a('v_add_f32_dpp v%d, v%d, v%d quad_perm:%s row_mask:0xf bank_mask:0xf' % (y, y, y, qp))
        a('v_cndmask_b32_e64 v%d, v%d, v%d, %s' % (x, x, y, sr(msk, 2)))
        pool.append(y)
        return x

    def tree_step(gap, flush=False):
        for level in (4, 3, 2, 1):
            L = levels[level]
            while len(L) >= 2 and (flush or (L[0][1] < gap and L[1][1] < gap)):
                x = L.pop(0)[0]
                y = L.pop(0)[0]
                levels[level + 1].append((merge(level, x, y), gap))
                if not flush:
                    break

    for j in range(16):
        t0, t1 = 2 * j, 2 * j + 1
        x = pool.pop(0)
        y = pool.pop(0)
        for k in range(4):
            a('v_dot2_f32_bf16 v%d, v%d, v%d, %s' % (x, slot(t0) + k, vQ + k, '0' if k == 0 else 'v%d' % x))
            a('v_dot2_f32_bf16 v%d, v%d, v%d, %s' % (y, slot(t1) + k, vQ + k, '0' if k == 0 else 'v%d' % y))
        v_upto(min(cfg['nve'] + ((cfg['nvk'] - cfg['nve']) * (j + 1) + 15) // 16, 2 * j + 6))
        tree_step(j)
        a('v_permlane16_swap_b32 v%d, v%d' % (x, y))
        a('v_add_f32 v%d, v%d, v%d' % (x, x, y))
        pool.append(y)
        levels[1].append((x, j))
        if j in (0, 7):
            stamp('K pair %d' % j)
    for g in range(16, 24):
        tree_step(g)
    assert len(levels[5]) == 1 and not any(levels[l] for l in (1, 2, 3, 4)), levels
    vS = levels[5][0][0]
    stamp('K done')
    vM = 54
    vE, vTM = 28, 29

    rnd_bf16(30, vS)
    vS = 30
    a('v_mov_b32 v%d, v%d' % (vE, vS))
    allred('v_max_f32', vE, vTM)
    a('s_lshl_b32 s%d, s%d, 2' % (sT1, sW))
    a('s_add_u32 s%d, s%d, %d' % (sT1, sT1, MX))
    a('v_mov_b32 v%d, s%d' % (vT0, sT1))
    a('ds_write_b32 v%d, v%d' % (vT0, vE))

    a.c('h partial')
    for k in range(4):
        a('v_perm_b32 v%d, v%d, v%d, s%d' % (vU + 2 * k, vW1 + 4 + k, vW1 + k, sSELLO))
        a('v_perm_b32 v%d, v%d, v%d, s%d' % (vU + 2 * k + 1, vW1 + 4 + k, vW1 + k, sSELHI))
    for j in range(8):
        a('v_dot2_f32_bf16 v%d, v%d, v%d, 0' % (vW1 + j, vU + j, vXW1))
    for j in range(4):
        a('v_permlane16_swap_b32 v%d, v%d' % (vW1 + j, vW1 + j + 4))
    for j in range(4):
        a('v_add_f32 v%d, v%d, v%d' % (vW1 + j, vW1 + j, vW1 + j + 4))
    for j in range(2):
        a('v_add_f32_dpp v%d, v%d, v%d row_ror:8 row_mask:0xf bank_mask:0x3' % (vW1 + 4 + j, vW1 + j, vW1 + j))
        a('v_add_f32_dpp v%d, v%d, v%d row_ror:8 row_mask:0xf bank_mask:0xc' % (vW1 + 4 + j, vW1 + 2 + j, vW1 + 2 + j))
    a('v_add_f32_dpp v%d, v%d, v%d row_shl:4 row_mask:0xf bank_mask:0x5' % (vW1, vW1 + 4, vW1 + 4))
    a('v_add_f32_dpp v%d, v%d, v%d row_shr:4 row_mask:0xf bank_mask:0xa' % (vW1, vW1 + 5, vW1 + 5))
    a('v_add_f32_dpp v%d, v%d, v%d quad_perm:[2,3,0,1] row_mask:0xf bank_mask:0xf' % (vW1, vW1, vW1))
    a('v_add_f32_dpp v%d, v%d, v%d quad_perm:[1,0,3,2] row_mask:0xf bank_mask:0xf' % (vW1, vW1, vW1))
    a('s_lshl_b32 s%d, s%d, 6' % (sT1, sW))
    a('s_add_u32 s%d, s%d, %d' % (sT1, sT1, HB))
    a('v_and_b32 v%d, 0x3c, v%d' % (vT1, vL))
    a('v_add_u32 v%d, s%d, v%d' % (vT1, sT1, vT1))
    a('ds_write_b32 v%d, v%d' % (vT1, vW1))
    v_upto(cfg['nvb'])
    a('s_waitcnt lgkmcnt(0)')
    a('s_barrier')
    stamp('B2')

    a('v_mov_b32 v%d, %d' % (vT0, MX))
    a('ds_read_b128 %s, v%d' % (vr(vU, 4), vT0))
    a('ds_read_b128 %s, v%d offset:16' % (vr(vU + 4, 4), vT0))
    a('v_max3_f32 v%d, v%d, v%d, v%d' % (vM, vU, vU + 1, vU + 2))
    a('v_max3_f32 v%d, v%d, v%d, v%d' % (vM, vM, vU + 3, vU + 4))
    a('v_max3_f32 v%d, v%d, v%d, v%d' % (vM, vM, vU + 5, vU + 6))
    a('v_max_f32 v%d, v%d, v%d' % (vM, vM, vU + 7))
    CS = f2h(LOG2E / 16.0)
    a('v_sub_f32 v%d, v%d, v%d' % (vE, vS, vM))
    a('v_mul_f32 v%d, %s, v%d' % (vE, CS, vE))
    a('v_exp_f32 v%d, v%d' % (vE, vE))
    a('v_mov_b32 v%d, v%d' % (vS, vE))
    a('v_mov_b32 v%d, v%d' % (vTM, vE))
    a('v_permlane16_swap_b32 v%d, v%d' % (vS, vTM))
    a('v_cvt_pk_bf16_f32 v%d, v%d, v%d' % (vS, vS, vTM))

    def rev4(x):
        return ((x & 1) << 3) | ((x & 2) << 1) | ((x & 4) >> 1) | ((x & 8) >> 3)
    for u in range(16):
        a('ds_swizzle_b32 v%d, v%d offset:%d' % (vPP + u, vS, rev4(u) << 5))
    allred('v_add_f32', vE, vTM)
    a('s_lshl_b32 s%d, s%d, 2' % (sT1, sW))
    a('s_add_u32 s%d, s%d, %d' % (sT1, sT1, LW))
    a('v_mov_b32 v%d, s%d' % (vT0, sT1))
    a('ds_write_b32 v%d, v%d' % (vT0, vE))
    stamp('softmax done')

    vHP = vXW1
    vB2F = 24
    WP = [[None] * 8, [None] * 8]

    def do_gate():
        a.c('gate')
        ta, tb, tc, td = vU, vU + 1, vU + 2, vU + 3
        vZ = vU + 4
        a('s_mov_b32 s%d, 0x3f803f80' % sT2)
        for k in range(4):
            a('v_lshlrev_b32 v%d, 16, v%d' % (ta, vXG + k))
            a('v_lshlrev_b32 v%d, 16, v%d' % (tb, vGW + k))
            a('v_and_b32 v%d, 0xffff0000, v%d' % (tc, vXG + k))
            a('v_and_b32 v%d, 0xffff0000, v%d' % (td, vGW + k))
            a('v_mul_f32 v%d, v%d, v%d' % (ta, ta, tb))
            a('v_mul_f32 v%d, v%d, v%d' % (tc, tc, td))
            a('v_cvt_pk_bf16_f32 v%d, v%d, v%d' % (ta, ta, tc))
            a('v_dot2_f32_bf16 v%d, v%d, s%d, %s' % (vZ, ta, sT2, '0' if k == 0 else 'v%d' % vZ))
        allred('v_add_f32', vZ, ta)
        rnd_bf16(vZ, vZ)
        a('v_mul_f32 v%d, %s, v%d' % (vZ, f2h(-LOG2E), vZ))
        a('v_exp_f32 v%d, v%d' % (vZ, vZ))
        a('v_add_f32 v%d, 1.0, v%d' % (vZ, vZ))
        a('v_rcp_f32 v%d, v%d' % (vZ, vZ))
        rnd_bf16(vG, vZ)
        a('v_sub_f32 v%d, 1.0, v%d' % (vOMG, vG))
        rnd_bf16(vOMG, vOMG)

    def do_ffn1():
        a.c('ffn second layer partial')
        a('v_lshrrev_b32 v%d, 3, v%d' % (vT0, vL))
        a('v_lshlrev_b32 v%d, 3, v%d' % (vT0, vT0))
        hb = vW1
        regs = [vXG, vXG + 2, vXG + 4, vXG + 6, vW1, vW1 + 2, vW1 + 4]
        for k in range(7):
            a('ds_read_b64 %s, v%d offset:%d' % (vr(regs[k], 2), vT0, HB + 64 * k))
        for k in range(1, 7):
            for j in range(2):
                a('v_add_f32 v%d, v%d, v%d' % (regs[0] + j, regs[0] + j, regs[k] + j))
        h0, h1 = regs[0], regs[0] + 1
        t0_, t1_ = vU, vU + 1
        a('v_cvt_pk_bf16_f32 v%d, v%d, v%d' % (t0_, h0, h1))
        a('v_lshlrev_b32 v%d, 16, v%d' % (h0, t0_))
        a('v_and_b32 v%d, 0xffff0000, v%d' % (h1, t0_))
        a('v_lshlrev_b32 v%d, 16, v%d' % (t0_, vB1))
        a('v_and_b32 v%d, 0xffff0000, v%d' % (t1_, vB1))
        a('v_add_f32 v%d, v%d, v%d' % (h0, h0, t0_))
        a('v_add_f32 v%d, v%d, v%d' % (h1, h1, t1_))
        a('v_cvt_pk_bf16_f32 v%d, v%d, v%d' % (t0_, h0, h1))
        a('v_lshlrev_b32 v%d, 16, v%d' % (h0, t0_))
        a('v_and_b32 v%d, 0xffff0000, v%d' % (h1, t0_))
        C1 = -2.0 * LOG2E * 0.7978845608028654
        C2 = C1 * 0.044715
        a('s_mov_b32 s%d, %s' % (sT1, f2h(C2)))
        a('s_mov_b32 s%d, %s' % (sT2, f2h(C1)))
        for hh, tt in ((h0, t0_), (h1, t1_)):
            a('v_mul_f32 v%d, v%d, v%d' % (tt, hh, hh))
        for hh, tt in ((h0, t0_), (h1, t1_)):
            a('v_mul_f32 v%d, s%d, v%d' % (tt, sT1, tt))
        for hh, tt in ((h0, t0_), (h1, t1_)):
            a('v_add_f32 v%d, s%d, v%d' % (tt, sT2, tt))
        for hh, tt in ((h0, t0_), (h1, t1_)):
            a('v_mul_f32 v%d, v%d, v%d' % (tt, tt, hh))
        for hh, tt in ((h0, t0_), (h1, t1_)):
            a('v_exp_f32 v%d, v%d' % (tt, tt))
        for hh, tt in ((h0, t0_), (h1, t1_)):
            a('v_add_f32 v%d, 1.0, v%d' % (tt, tt))
        for hh, tt in ((h0, t0_), (h1, t1_)):
            a('v_rcp_f32 v%d, v%d' % (tt, tt))
        for hh, tt in ((h0, t0_), (h1, t1_)):
            a('v_mul_f32 v%d, v%d, v%d' % (hh, hh, tt))
        a('v_cvt_pk_bf16_f32 v%d, v%d, v%d' % (vHP, h0, h1))

    def do_ffn2():
        for k in range(4):
            a('v_perm_b32 v%d, v%d, v%d, s%d' % (vU + 2 * k, vW2 + 4 + k, vW2 + k, sSELLO))
            a('v_perm_b32 v%d, v%d, v%d, s%d' % (vU + 2 * k + 1, vW2 + 4 + k, vW2 + k, sSELHI))
        for j in range(8):
            a('v_dot2_f32_bf16 v%d, v%d, v%d, 0' % (vACCF + j, vU + j, vHP))
        a('s_nop 1')
        for j in range(8):
            a('v_mul_f32 v%d, v%d, v%d' % (vACCF + j, vACCF + j, vOMG))
        a('v_lshlrev_b32 v%d, 16, v%d' % (vB2F, vB2))
        a('v_and_b32 v%d, 0xffff0000, v%d' % (vB2F + 1, vB2))
        a('v_lshlrev_b32 v%d, 16, v%d' % (vB2F + 2, vB2 + 1))
        a('v_and_b32 v%d, 0xffff0000, v%d' % (vB2F + 3, vB2 + 1))
        for j in range(4):
            a('v_mul_f32 v%d, v%d, v%d' % (vB2F + j, vB2F + j, vOMG))

    def do_wop():
        a.c('wo pre-permute')
        spare = vW2
        for p in range(2):
            A, B = vWO + 8 * p, vWO + 8 * p + 4
            for k in range(4):
                a('v_perm_b32 v%d, v%d, v%d, s%d' % (spare, B + k, A + k, sSELLO))
                a('v_perm_b32 v%d, v%d, v%d, s%d' % (B + k, B + k, A + k, sSELHI))
                WP[p][2 * k] = spare
                WP[p][2 * k + 1] = B + k
                spare = A + k


    a.c('V phase')
    side = {0: do_gate, 1: do_ffn1, 2: do_ffn2, 3: do_wop}
    for u in range(16):
        v_upto(2 * u + cfg['win'])
        A, B = vslot(2 * u), vslot(2 * u + 1)
        for k in range(4):
            a('v_perm_b32 v%d, v%d, v%d, s%d' % (vU + 2 * k, B + k, A + k, sSELLO))
            a('v_perm_b32 v%d, v%d, v%d, s%d' % (vU + 2 * k + 1, B + k, A + k, sSELHI))
        for j in range(8):
            c = '0' if u == 0 else 'v%d' % (vACC + j)
            a('v_dot2_f32_bf16 v%d, v%d, v%d, %s' % (vACC + j, vU + j, vPP + u, c))
        if u in side:
            side[u]()
        if u == cfg['chk_u']:
            a('s_cmp_lg_u32 s%d, 7' % sW)
            a('s_cbranch_scc1 L_NOCHK')
            a('v_and_b32 v%d, 15, v%d' % (vT0, vL))
            a('s_lshl_b32 s%d, s%d, 4' % (sT1, sB))
            a('s_add_u32 s%d, s%d, %d' % (sT1, sT1, CNT // 4))
            a('v_add_u32 v%d, s%d, v%d' % (vT0, sT1, vT0))
            a('v_lshlrev_b32 v%d, 2, v%d' % (vSPARE, vT0))
            a('global_load_dword v%d, v%d, %s sc1' % (vCHK, vSPARE, sr(pDBG, 2)), optional=True)
            a.label('L_NOCHK')
        if u in (0, 7):
            stamp('V pair %d' % u)
    stamp('V done')
    for j in range(4):
        a('v_permlane32_swap_b32 v%d, v%d' % (vACC + j, vACC + j + 4))
    for j in range(4):
        a('v_add_f32 v%d, v%d, v%d' % (vR + j, vACC + j, vACC + j + 4))
    a('ds_write_b128 v%d, %s' % (vLOW, vr(vR, 4)))
    a('v_and_b32 v%d, 7, v%d' % (vT0, vL))
    a('v_lshlrev_b32 v%d, 2, v%d' % (vT0, vT0))
    a('s_waitcnt lgkmcnt(0)')
    a('s_barrier')
    stamp('B3')
    vO = 48
    a('ds_read_b128 %s, v%d' % (vr(vO, 4), vLOR))
    a('ds_read_b32 v%d, v%d offset:%d' % (vM + 1, vT0, LW))
    five = [vO, vO + 1, vO + 2, vO + 3, vM + 1]
    for ctl in ('quad_perm:[1,0,3,2]', 'quad_perm:[2,3,0,1]', 'row_half_mirror'):
        for r in five:
            a('v_add_f32_dpp v%d, v%d, v%d %s row_mask:0xf bank_mask:0xf' % (r, r, r, ctl))
    a('s_mov_b32 exec_lo, 0x01010101')
    a('s_mov_b32 exec_hi, 0x01010101')
    a('global_store_dwordx4 v%d, %s, %s sc1' % (vAO, vr(vO, 4), sr(pWS, 2)))
    a('s_mov_b64 exec, 1')
    a('global_store_dwordx2 v%d, %s, %s sc1' % (vAML, vr(vM, 2), sr(pWS, 2)))
    a('s_mov_b64 exec, -1')
    stamp('o published')
    if cfg['stop'] == 'pub':
        a('s_branch L_FIN')
    a('s_cmp_lg_u32 s%d, 7' % sW)
    a.save('w7')
    a('s_cbranch_scc1 L_YPART')
    a('v_cmp_ne_u32 vcc, 8, v%d' % vCHK)
    a.save('chk')
    a('s_cbranch_vccnz L_CHK_SLOW')
    a.label('L_CHK_OK')

    a.c('hop 1')
    a('s_mov_b32 s%d, %d' % (sSPIN, cfg['spin']))
    vPo, vPm = 64, 68
    a.label('L_POLL1')
    a('global_load_dwordx4 %s, v%d, %s sc1' % (vr(vPo, 4), vPO, sr(pWS, 2)))
    a('global_load_dwordx2 %s, v%d, %s sc1' % (vr(vPm, 2), vPML, sr(pWS, 2)))
    a('s_sub_u32 s%d, s%d, 1' % (sSPIN, sSPIN))
    a('s_cmp_eq_u32 s%d, 0' % sSPIN)
    a('s_waitcnt vmcnt(0)')
    a('s_cbranch_scc1 L_POLL1_DONE')
    a('v_max3_u32 v70, v64, v65, v66')
    a('v_max3_u32 v71, v67, v68, v69')
    a('v_max_u32 v70, v70, v71')
    a('v_cmp_eq_u32 vcc, -1, v70')
    a('s_cbranch_vccnz L_POLL1')
    a.label('L_POLL1_DONE')
    a('s_nop 0')
    stamp('hop1 data')
    m, l, Mx, w_, L_ = 68, 69, 70, 71, 72
    a('v_max_f32_dpp v%d, v%d, v%d quad_perm:[1,0,3,2] row_mask:0xf bank_mask:0xf' % (Mx, m, m))
    a('v_max_f32_dpp v%d, v%d, v%d quad_perm:[2,3,0,1] row_mask:0xf bank_mask:0xf' % (Mx, Mx, Mx))
    a('v_max_f32_dpp v%d, v%d, v%d row_half_mirror row_mask:0xf bank_mask:0xf' % (Mx, Mx, Mx))
    a('v_sub_f32 v%d, v%d, v%d' % (w_, m, Mx))
    a('v_mul_f32 v%d, %s, v%d' % (w_, CS, w_))
    a('v_exp_f32 v%d, v%d' % (w_, w_))
    a('v_mul_f32 v%d, v%d, v%d' % (L_, l, w_))
    for j in range(4):
        a('v_mul_f32 v%d, v%d, v%d' % (vPo + j, vPo + j, w_))
    five = [L_, vPo, vPo + 1, vPo + 2, vPo + 3]
    for ctl in ('quad_perm:[1,0,3,2]', 'quad_perm:[2,3,0,1]', 'row_half_mirror'):
        for r in five:
            a('v_add_f32_dpp v%d, v%d, v%d %s row_mask:0xf bank_mask:0xf' % (r, r, r, ctl))
    a('v_rcp_f32 v%d, v%d' % (L_, L_))
    a('v_mul_f32 v%d, v%d, v%d' % (L_, L_, vG))
    for j in range(4):
        a('v_mul_f32 v%d, v%d, v%d' % (vPo + j, vPo + j, L_))
    a('v_cvt_pk_bf16_f32 v74, v%d, v%d' % (vPo, vPo + 1))
    a('v_cvt_pk_bf16_f32 v75, v%d, v%d' % (vPo + 2, vPo + 3))
    a('v_lshrrev_b32 v%d, 3, v%d' % (vT0, vL))
    a('v_lshlrev_b32 v%d, 3, v%d' % (vT0, vT0))
    a('s_mov_b32 exec_lo, 0x01010101')
    a('s_mov_b32 exec_hi, 0x01010101')
    a('ds_write_b64 v%d, v[74:75] offset:%d' % (vT0, OCB))
    a('s_mov_b64 exec, -1')
    a('s_waitcnt lgkmcnt(0)')
    a('s_barrier')
    stamp('B4')
    a('s_cmp_ge_u32 s%d, 28' % sN)
    a('s_cbranch_scc1 L_FIN')
    a('s_mov_b32 s%d, %d' % (sSPIN, cfg['spin']))
    a('v_add_u32 v%d, 4096, v%d' % (vT0, vPY))
    a.label('L_POLL2')
    for k in range(8):
        a('global_load_dwordx4 %s, v%d, %s offset:%d sc1' % (vr(64 + 4 * k, 4), vPY if k < 4 else vT0, sr(pWS, 2), (k % 4) * 1024))
    a('s_sub_u32 s%d, s%d, 1' % (sSPIN, sSPIN))
    a('s_cmp_eq_u32 s%d, 0' % sSPIN)
    a('s_waitcnt vmcnt(0)')
    a('s_cbranch_scc1 L_POLL2_DONE')
    a('v_max3_u32 v100, v64, v65, v66')
    a('v_max3_u32 v101, v67, v68, v69')
    for k in range(70, 94, 4):
        a('v_max3_u32 v100, v100, v%d, v%d' % (k, k + 1))
        a('v_max3_u32 v101, v101, v%d, v%d' % (k + 2, k + 3))
    a('v_max3_u32 v100, v100, v94, v95')
    a('v_max_u32 v100, v100, v101')
    a('v_cmp_eq_u32 vcc, -1, v100')
    a('s_cbranch_vccnz L_POLL2')
    a.label('L_POLL2_DONE')
    a('s_nop 0')
    stamp('hop2 data')
    for step in (16, 8, 4):
        for base in range(64, 64 + step, 4):
            for j in range(4):
                a('v_add_f32 v%d, v%d, v%d' % (base + j, base + j, base + step + j))
    for n in (8, 4, 2, 1):
        for j in range(4):
            a('v_add_f32_dpp v%d, v%d, v%d row_ror:%d row_mask:0xf bank_mask:0xf' % (64 + j, 64 + j, 64 + j, n))
    for j in range(4):
        a('v_add_f32 v%d, v%d, v%d' % (64 + j, 64 + j, vB2F + j))
    a('v_cvt_pk_bf16_f32 v64, v64, v65')
    a('v_cvt_pk_bf16_f32 v65, v66, v67')
    if cfg['delay'] or cfg['delay_abs']:
        if cfg['delay']:
            a('s_memrealtime s[94:95]')
            a('s_waitcnt lgkmcnt(0)')
            a('s_add_u32 s93, s94, %d' % cfg['delay'])
        else:
            a('s_add_u32 s93, s101, %d' % cfg['delay_abs'])
        a.label('L_DELAY')
        a('s_memrealtime s[94:95]')
        a('s_waitcnt lgkmcnt(0)')
        a('s_cmp_lt_u32 s94, s93')
        a('s_cbranch_scc1 L_DELAY')
    a('s_mul_i32 s%d, s%d, 896' % (sT1, sB))
    a('s_lshl_b32 s%d, s%d, 5' % (sT2, sN))
    a('s_add_u32 s%d, s%d, s%d' % (sT1, sT1, sT2))
    a('v_lshrrev_b32 v%d, 4, v%d' % (vT0, vL))
    a('v_lshl_add_u32 v%d, v%d, 3, s%d' % (vT0, vT0, sT1))
    a('s_mov_b32 exec_lo, 0x00010001')
    a('s_mov_b32 exec_hi, 0x00010001')
    a('global_store_dwordx2 v%d, v[64:65], %s' % (vT0, sr(pOUT, 2)))
    a('s_mov_b64 exec, -1')
    stamp('out stored')

    a('s_branch L_FIN')

    a.label('L_YPART')
    a.restore('w7')
    a('v_lshrrev_b32 v%d, 3, v%d' % (vT0, vL))
    a('v_lshlrev_b32 v%d, 3, v%d' % (vT0, vT0))
    a('s_barrier')
    a('ds_read_b64 v[74:75], v%d offset:%d' % (vT0, OCB))
    for j in range(8):
        a('v_dot2_f32_bf16 v%d, v%d, v74, v%d' % (vACCF + j, WP[0][j], vACCF + j))
    for j in range(8):
        a('v_dot2_f32_bf16 v%d, v%d, v75, v%d' % (vACCF + j, WP[1][j], vACCF + j))
    y = vACCF
    for j in range(4):
        a('v_permlane32_swap_b32 v%d, v%d' % (y + j, y + j + 4))
    for j in range(4):
        a('v_add_f32 v%d, v%d, v%d' % (y + j, y + j, y + j + 4))
    a('v_permlane16_swap_b32 v%d, v%d' % (y, y + 2))
    a('v_permlane16_swap_b32 v%d, v%d' % (y + 1, y + 3))
    a('v_add_f32 v%d, v%d, v%d' % (y, y, y + 2))
    a('v_add_f32 v%d, v%d, v%d' % (y + 1, y + 1, y + 3))
    a('v_add_f32_dpp v%d, v%d, v%d row_ror:8 row_mask:0xf bank_mask:0xf' % (y, y, y))
    a('v_add_f32_dpp v%d, v%d, v%d row_ror:8 row_mask:0xf bank_mask:0xf' % (y + 1, y + 1, y + 1))
    a('s_mov_b32 exec_lo, 0x00ff00ff')
    a('s_mov_b32 exec_hi, 0x00ff00ff')
    a('global_store_dwordx2 v%d, %s, %s sc1' % (vAY, vr(y, 2), sr(pWS, 2)))
    a('s_mov_b64 exec, -1')
    stamp('y published')

    a.label('L_FIN')
    if cfg['stamps']:
        a('s_nop 4')
        a('s_memrealtime s[100:101]')
        a('s_waitcnt lgkmcnt(0)')
        a('v_writelane_b32 v31, s100, 63')
        a('s_lshl_b32 s94, s2, 3')
        a('s_add_u32 s94, s94, s%d' % sW)
        a('s_lshl_b32 s94, s94, 8')
        a('s_add_u32 s94, s94, %d' % STREG)
        a('v_lshl_add_u32 v30, v%d, 2, s94' % vL)
        a('global_store_dword v30, v31, %s' % sr(pWS, 2))
        if cfg['dbgtime']:
            sel = cfg['dbgtime']
            a('s_add_u32 s94, s%d, 1' % sW)
            a('s_and_b32 s94, s94, 7')
            a('s_cmp_gt_u32 s94, 1')
            a('s_cbranch_scc1 L_NODBG')
            a('v_mov_b32 v29, 0')
            for i, nm in enumerate(sel):
                src = stamp_ids[nm] if nm != 'end' else 63
                a('v_readlane_b32 s94, v31, %d' % src)
                if i == 0:
                    a('s_not_b32 s94, s94')
                a('s_nop 3')
                a('v_writelane_b32 v29, s94, %d' % i)
            a('v_lshlrev_b32 v28, 2, v%d' % vL)
            a('s_mov_b64 exec, 0xffff')
            a('global_atomic_umax v28, v29, %s' % sr(pDBG, 2))
            a('s_mov_b64 exec, -1')
            a.label('L_NODBG')
    a('s_endpgm')

    a.label('L_CHK_SLOW')
    a.restore('chk')
    a('s_mov_b32 s%d, %d' % (sSPIN, cfg['spin']))
    a.label('L_CHK_LOOP')
    a('global_load_dword v%d, v%d, %s sc1' % (vCHK, vSPARE, sr(pDBG, 2)))
    a('s_sub_u32 s%d, s%d, 1' % (sSPIN, sSPIN))
    a('s_cmp_eq_u32 s%d, 0' % sSPIN)
    a('s_waitcnt vmcnt(0)')
    a('s_cbranch_scc1 L_CHK_OK')
    a('v_cmp_ne_u32 vcc, 8, v%d' % vCHK)
    a('s_cbranch_vccnz L_CHK_LOOP')
    a('s_branch L_CHK_OK')
    a.label('L_END')
    body = a.finalize()
    return body


HEADER = open('cdna_kernels/%s.s.ref' % NAME).read().split('; Override launch geometry')[0]


def wrap(body, cfg):
    s = HEADER
    s += '; Override launch geometry by editing the next line (default: block=256,\n'
    s += '; grid=ceil(out_elems/256), lds=0). Harness parses it; keep it on one line.\n'
    s += '; @launch grid=(256,1,1) block=(512,1,1) lds=%d\n' % LDS_BYTES
    s += '.amdgcn_target "amdgcn-amd-amdhsa--gfx950"\n.text\n.globl %s_kernel\n.p2align 8\n' % NAME
    s += '.type %s_kernel,@function\n%s_kernel:\n' % (NAME, NAME)
    s += body
    s += 's_endpgm\n'
    s += '.section .rodata,"a"\n.p2align 6\n.amdhsa_kernel %s_kernel\n' % NAME
    s += '  .amdhsa_next_free_vgpr 256\n  .amdhsa_next_free_sgpr 102\n  .amdhsa_accum_offset 256\n'
    s += '  .amdhsa_group_segment_fixed_size 0\n  .amdhsa_kernarg_size 112\n  .amdhsa_user_sgpr_count 2\n'
    s += '  .amdhsa_user_sgpr_kernarg_segment_ptr 1\n  .amdhsa_system_sgpr_workgroup_id_x 1\n.end_amdhsa_kernel\n'
    return s


def build(out, **kw):
    cfg = dict(DEFAULT)
    cfg.update(kw)
    s = wrap(gen(cfg), cfg)
    open(out, 'w').write(s)
    return s


if __name__ == '__main__':
    out = sys.argv[1] if len(sys.argv) > 1 else 'cdna_kernels/%s.s' % NAME
    kw = {}
    for arg in sys.argv[2:]:
        k, v = arg.split('=')
        kw[k] = eval(v)
    build(out, **kw)
    print('wrote', out)
```

```python
import sys
from asmlib import Asm

NAME = 'gated_mix__mha_block_cached__dense_activation_gelu__decode'

DEFAULT = dict(
    nt_kv=True,
    nt_w='q12ox',
    gran=4,
    pre=36,
    adr=8,
    q0=8,
    q1=16,
    q2=24,
    q3=0,
    nvk=12,
    win=12,
    thr=5,
    thr0=5,
    thr_v=0,
    vstep=False,
    prio=3,
    p_w1=0, p_w2=6, p_wo=8, p_hp=6,
    p_g=0, p_gc=3,
    chk_u=4,
    nochk=False,
    noclr=False,
    noflag=False,
    fl='atomic',
    nocnt=False,
    nowait=False,
    sleep=0,
    spin=20000,
    dbgtime=False,
    stop=None,
    stamps=False,
)

sXCD, sH, sB, sC, sW, sN = 3, 4, 5, 6, 7, 8
sR, sR1, sLI, sSL, sVAL, sG = 9, 10, 11, 12, 13, 14
sT0 = 15
pX, pK, pV, pWQ, pWO, pW1, pB1 = 16, 18, 20, 22, 24, 28, 30
pW2, pB2, pG, pOUT, pDBG, pWS = 32, 34, 36, 38, 40, 42
rK, rV, rWQ, rX, rW1, rW2, rWO, rG, rB1, rB2 = 44, 48, 52, 56, 60, 64, 68, 72, 76, 80
sSELLO, sSELHI = 84, 85
sOFF = 86
sWQO = 93
sT1, sT2 = 94, 95
sKVO = 26
sM1 = 96
sM0 = 98
sSPIN = 100

vL = 0
vO16 = 1
vQA = 2
vAO = 3
vAML = 4
vAY = 5
vPO = 6
vPML = 7
vPY = 8
vQP = 9
vLOW = 10
vWQ = 11
vLOR = 12
vT0, vT1, vT2 = 13, 14, 15
vX0, vX1 = 16, 24
vACCF = 16
vACC = 32
vQ = 40
vR = 44
vT = 48
vU = 56
RING = 64
vPP = 176
VE = 192
vW1, vW2, vWO = 128, 136, 144
vXW1, vB1, vOMG = 160, 161, 162
vXG, vGW, vB2, vCHK, vSPARE, vG = 128, 132, 136, 138, 139, 140

OBUF, OSTR = 0, 1040
MX, LW, HB, OCB, OMB, QB = 8320, 8352, 8384, 8896, 9024, 9088
LDS_BYTES = 9728

OREG = 0
YREG = 0x80000
YB = 32 * 8192
QREG = 0x100000
STREG = 0x200000
CNT = 128

LOG2E = 1.4426950408889634


def f2h(x):
    import struct
    return '0x%08x' % struct.unpack('<I', struct.pack('<f', x))[0]


def slot(t):
    return RING + 4 * t


def vslot(t):
    return VE + 4 * t if t < 16 else RING + 4 * (t - 16)


def vr(a, n):
    return 'v[%d:%d]' % (a, a + n - 1)


def sr(a, n):
    return 's[%d:%d]' % (a, a + n - 1)


def gen(cfg):
    a = Asm()
    NT = ' nt' if cfg['nt_kv'] else ''
    NWQ, NW1, NW2, NWO, NW = [' nt' if ch in cfg['nt_w'] else '' for ch in 'q12ox']
    gran = cfg['gran']
    CS = f2h(LOG2E / 16.0)

    def kvoff(t):
        return (t // gran) * gran * 8192 + (t % gran) * 1024
    stamp_ids = {}

    def stamp(name):
        if not cfg['stamps']:
            return
        i = stamp_ids.setdefault(name, len(stamp_ids))
        a.c('stamp %d %s' % (i, name))
        a('s_memrealtime s[100:101]')
        a('s_waitcnt lgkmcnt(0)')
        a('v_writelane_b32 v31, s100, %d' % i)

    def srd(r, base, off_sgpr, nrec):
        if off_sgpr is None:
            a('s_mov_b32 s%d, s%d' % (r, base))
            a('s_mov_b32 s%d, s%d' % (r + 1, base + 1))
        else:
            a('s_add_u32 s%d, s%d, s%d' % (r, base, off_sgpr))
            a('s_addc_u32 s%d, s%d, 0' % (r + 1, base + 1))
        a('s_mov_b32 s%d, %s' % (r + 2, nrec))
        a('s_mov_b32 s%d, 0x00020000' % (r + 3))

    def kv_load(rs, t):
        reg = slot(t) if rs == rK else vslot(t)
        if gran >= 4:
            so = '0' if t < 4 else 's%d' % (sOFF + t // 4 - 1)
            off = (t % 4) * 1024
        else:
            off = 0
            so = '0'
            if t > 0:
                a('s_mov_b32 s%d, %d' % (sKVO, kvoff(t)))
                so = 's%d' % sKVO
        a('buffer_load_dwordx4 %s, v%d, %s, %s offen offset:%d%s' % (vr(reg, 4), vO16, sr(rs, 4), so, off, NT))

    seq = [0]

    def seq_upto(n, thr=0):
        n = min(n, 64)
        while seq[0] < n:
            t = seq[0]
            if thr and t >= thr:
                a('s_waitcnt vmcnt(%d)' % (thr - 1))
            if t < 32:
                kv_load(rK, t)
            else:
                kv_load(rV, t - 32)
            seq[0] += 1

    def v_upto(n, thr=0):
        seq_upto(32 + min(n, 32), thr)

    def allred(op, reg, tmp):
        for n in (8, 4, 2, 1):
            a('%s_dpp v%d, v%d, v%d row_ror:%d row_mask:0xf bank_mask:0xf' % (op, reg, reg, reg, n))
        a('v_mov_b32 v%d, v%d' % (tmp, reg))
        a('v_permlane16_swap_b32 v%d, v%d' % (reg, tmp))
        a('%s v%d, v%d, v%d' % (op, reg, reg, tmp))
        a('v_mov_b32 v%d, v%d' % (tmp, reg))
        a('v_permlane32_swap_b32 v%d, v%d' % (reg, tmp))
        a('%s v%d, v%d, v%d' % (op, reg, reg, tmp))

    def rnd_bf16(dst, src):
        a('v_cvt_pk_bf16_f32 v%d, v%d, v%d' % (dst, src, src))
        a('v_and_b32 v%d, 0xffff0000, v%d' % (dst, dst))

    a('s_cmp_ge_u32 s2, 256')
    a('s_cbranch_scc1 L_END')
    a('s_load_dwordx16 s[16:31], s[0:1], 0')
    a('s_load_dwordx8 s[32:39], s[0:1], 64')
    a('s_load_dwordx4 s[40:43], s[0:1], 96')
    if cfg['stamps']:
        a('v_mov_b32 v31, 0')
    a('v_lshrrev_b32 v%d, 6, v0' % vT0)
    a('v_and_b32 v%d, 63, v0' % vL)
    a('v_readfirstlane_b32 s%d, v%d' % (sW, vT0))
    a('s_and_b32 s%d, s2, 7' % sXCD)
    a('s_lshr_b32 s%d, s2, 3' % sR)
    a('s_and_b32 s%d, s%d, 1' % (sR1, sR))
    a('s_lshl_b32 s%d, s%d, 3' % (sLI, sR1))
    a('s_add_u32 s%d, s%d, s%d' % (sH, sLI, sXCD))
    a('s_lshr_b32 s%d, s%d, 1' % (sB, sR))
    a('s_and_b32 s%d, s%d, 1' % (sB, sB))
    a('s_lshr_b32 s%d, s%d, 2' % (sC, sR))
    a('s_lshl_b32 s%d, s%d, 4' % (sG, sB))
    a('s_add_u32 s%d, s%d, s%d' % (sG, sG, sH))
    a('s_lshl_b32 s%d, s%d, 4' % (sN, sC))
    a('s_add_u32 s%d, s%d, s%d' % (sN, sN, sH))
    a('v_lshlrev_b32 v%d, 4, v%d' % (vO16, vL))
    a('s_mov_b32 s%d, 0x05040100' % sSELLO)
    a('s_mov_b32 s%d, 0x07060302' % sSELHI)
    stamp('entry')
    a('s_cmp_eq_u32 s%d, 0' % sW)
    a('s_cbranch_scc1 L_QWAVE')

    def kv_prep():
        a('s_lshl_b32 s%d, s%d, 21' % (sT1, sG))
        a('s_lshl_b32 s%d, s%d, 18' % (sT2, sC))
        a('s_add_u32 s%d, s%d, s%d' % (sT1, sT1, sT2))
        a('s_mul_i32 s%d, s%d, %d' % (sT2, sW, gran * 1024))
        a('s_add_u32 s%d, s%d, s%d' % (sT1, sT1, sT2))
        if gran >= 4:
            for j in range(1, 8):
                a('s_mov_b32 s%d, %d' % (sOFF + j - 1, kvoff(4 * j)))

    def kv_srds():
        srd(rK, pK, sT1, str(kvoff(31) + 1024))
        srd(rV, pV, sT1, str(kvoff(31) + 1024))

    def addr_block():
        a.c('hand-off addresses')
        a('s_lshl_b32 s%d, s%d, 3' % (sT1, sG))
        a('s_add_u32 s%d, s%d, s%d' % (sT2, sT1, sW))
        a('s_lshl_b32 s%d, s%d, 11' % (sT2, sT2))
        a('s_lshl_b32 s%d, s%d, 7' % (sWQO, sC))
        a('s_add_u32 s%d, s%d, s%d' % (sWQO, sWQO, sT2))
        a('v_lshrrev_b32 v%d, 3, v%d' % (vT0, vL))
        a('v_and_b32 v%d, 7, v%d' % (vT1, vL))
        a('v_lshl_add_u32 v%d, v%d, 4, s%d' % (vAO, vT0, sWQO))
        a('s_lshl_b32 s%d, s%d, 3' % (sWQO, sC))
        a('s_add_u32 s%d, s%d, s%d' % (sWQO, sWQO, sT2))
        a('s_add_u32 s%d, s%d, 1024' % (sWQO, sWQO))
        a('v_mov_b32 v%d, s%d' % (vAML, sWQO))
        a('s_add_u32 s%d, s%d, s%d' % (sT2, sT1, sC))
        a('s_lshl_b32 s%d, s%d, 11' % (sT2, sT2))
        a('v_lshlrev_b32 v%d, 7, v%d' % (vPO, vT1))
        a('v_lshl_add_u32 v%d, v%d, 4, v%d' % (vPO, vT0, vPO))
        a('v_add_u32 v%d, s%d, v%d' % (vPO, sT2, vPO))
        a('s_add_u32 s%d, s%d, 1024' % (sT2, sT2))
        a('v_lshl_add_u32 v%d, v%d, 3, s%d' % (vPML, vT1, sT2))
        a('v_mul_u32_u24 v%d, %d, v%d' % (vLOR, OSTR, vT1))
        a('v_lshl_add_u32 v%d, v%d, 4, v%d' % (vLOR, vT0, vLOR))
        a('s_lshl_b32 s%d, s%d, 7' % (sT1, sW))
        a('s_add_u32 s%d, s%d, %d' % (sT1, sT1, OBUF))
        a('v_add_u32 v%d, s%d, v%d' % (vLOR, sT1, vLOR))
        a('v_lshrrev_b32 v%d, 5, v%d' % (vT0, vL))
        a('v_and_b32 v%d, 31, v%d' % (vT2, vL))
        a('v_lshlrev_b32 v%d, 4, v%d' % (vT0, vT0))
        a('v_lshl_add_u32 v%d, v%d, 5, v%d' % (vT0, vT2, vT0))
        a('s_mul_i32 s%d, s%d, %d' % (sT1, sW, OSTR))
        a('s_add_u32 s%d, s%d, %d' % (sT1, sT1, OBUF))
        a('v_add_u32 v%d, s%d, v%d' % (vLOW, sT1, vT0))
        a('s_mul_i32 s%d, s%d, %d' % (sT1, sB, YB))
        a('s_add_u32 s%d, s%d, %d' % (sT1, sT1, YREG))
        a('s_lshl_b32 s%d, s%d, 15' % (sT2, sW))
        a('s_add_u32 s%d, s%d, s%d' % (sT2, sT2, sT1))
        a('s_lshl_b32 s%d, s%d, 6' % (sWQO, sN))
        a('s_add_u32 s%d, s%d, s%d' % (sT2, sT2, sWQO))
        a('v_lshrrev_b32 v%d, 1, v%d' % (vT2, vT1))
        a('v_lshlrev_b32 v%d, 13, v%d' % (vAY, vT2))
        a('v_and_b32 v%d, 1, v%d' % (vT2, vL))
        a('v_lshl_add_u32 v%d, v%d, 5, v%d' % (vAY, vT2, vAY))
        a('v_lshrrev_b32 v%d, 5, v%d' % (vT2, vL))
        a('v_lshl_add_u32 v%d, v%d, 4, v%d' % (vAY, vT2, vAY))
        a('v_bfe_u32 v%d, v%d, 4, 1' % (vT2, vL))
        a('v_lshl_add_u32 v%d, v%d, 3, v%d' % (vAY, vT2, vAY))
        a('v_add_u32 v%d, s%d, v%d' % (vAY, sT2, vAY))
        a('s_min_u32 s%d, s%d, 27' % (sT2, sN))
        a('s_lshl_b32 s%d, s%d, 13' % (sT2, sT2))
        a('s_add_u32 s%d, s%d, s%d' % (sT2, sT2, sT1))
        a('v_and_b32 v%d, 15, v%d' % (vT2, vL))
        a('v_lshlrev_b32 v%d, 6, v%d' % (vPY, vT2))
        a('v_lshrrev_b32 v%d, 4, v%d' % (vT2, vL))
        a('v_lshl_add_u32 v%d, v%d, 4, v%d' % (vPY, vT2, vPY))
        a('v_add_u32 v%d, s%d, v%d' % (vPY, sT2, vPY))
        a('s_mov_b32 s%d, 0xcccccccc' % sM1)
        a('s_mov_b32 s%d, 0xcccccccc' % (sM1 + 1))
        a('s_mov_b32 s%d, 0xaaaaaaaa' % sM0)
        a('s_mov_b32 s%d, 0xaaaaaaaa' % (sM0 + 1))
        a('s_lshl_b32 s%d, s%d, 3' % (sLI, sR1))
        a('s_add_u32 s%d, s%d, s%d' % (sLI, sLI, sC))
        a('s_mul_i32 s%d, s%d, 14' % (sSL, sXCD))
        a('s_add_u32 s%d, s%d, s%d' % (sSL, sSL, sLI))
        a('s_cmp_lt_u32 s%d, 14' % sLI)
        a('s_cselect_b32 s%d, s%d, 0' % (sSL, sSL))
        a('s_cselect_b32 s%d, -1, 0' % sVAL)

    pre = cfg['pre']
    assert 32 <= pre <= 48 or pre < 32

    a.save('head')
    kv_prep()
    a('s_waitcnt lgkmcnt(0)')
    stamp('kernarg')
    kv_srds()
    seq_upto(min(cfg['adr'], pre), cfg['thr'])
    addr_block()
    seq_upto(pre, cfg['thr'])
    stamp('pre issued')
    a.save('b1')
    a('s_branch L_B1')

    a.label('L_QWAVE')
    a.restore('head')
    seq[0] = 0
    a.c('wave 0: wq tile, x pairs, slot clears')
    if cfg['prio']:
        a('s_setprio %d' % cfg['prio'])
    a('s_lshl_b32 s%d, s%d, 3' % (sR, sB))
    a('s_add_u32 s%d, s%d, s%d' % (sR, sR, sC))
    a('s_lshr_b32 s%d, s%d, 2' % (sLI, sR))
    a('s_and_b32 s%d, s%d, 3' % (sR, sR))
    a('v_lshrrev_b32 v%d, 3, v%d' % (vT0, vL))
    a('v_and_b32 v%d, 7, v%d' % (vT1, vL))
    a('s_mul_i32 s%d, s%d, %d' % (sT2, sLI, 112 * 8192))
    a('s_lshl_b32 s%d, s%d, 9' % (sWQO, sH))
    a('s_add_u32 s%d, s%d, s%d' % (sT2, sT2, sWQO))
    a('s_lshl_b32 s%d, s%d, 7' % (sWQO, sR))
    a('s_add_u32 s%d, s%d, s%d' % (sT2, sT2, sWQO))
    a('v_mul_u32_u24 v%d, %d, v%d' % (vWQ, 14 * 8192, vT0))
    a('v_lshl_add_u32 v%d, v%d, 4, v%d' % (vWQ, vT1, vWQ))
    a('v_mul_u32_u24 v%d, 28, v%d' % (vT2, vT0))
    a('s_mul_i32 s%d, s%d, 224' % (sT1, sLI))
    a('s_waitcnt lgkmcnt(0)')
    stamp('kernarg')
    srd(rWQ, pWQ, sT2, str(111 * 8192 + 128))

    def wq_regs(m):
        return VE + 8 * m, VE + 8 * m + 4

    def wq_load(row):
        r = wq_regs(row // 2)[row % 2]
        if row == 0:
            a('buffer_load_dwordx4 %s, v%d, %s, 0 offen%s' % (vr(r, 4), vWQ, sr(rWQ, 4), NWQ))
        else:
            a('s_mov_b32 s%d, %d' % (sWQO, row * 8192))
            a('buffer_load_dwordx4 %s, v%d, %s, s%d offen%s' % (vr(r, 4), vWQ, sr(rWQ, 4), sWQO, NWQ))
    for row in range(14):
        wq_load(row)
    srd(rX, pX, None, '1792')
    a('buffer_load_dwordx4 %s, v%d, %s, s%d offen%s' % (vr(vX0, 4), vT2, sr(rX, 4), sT1, NW))
    a('buffer_load_dwordx3 %s, v%d, %s, s%d offen offset:16%s' % (vr(vX0 + 4, 3), vT2, sr(rX, 4), sT1, NW))
    a('buffer_load_dwordx4 %s, v%d, %s, s%d offen offset:896%s' % (vr(vX1, 4), vT2, sr(rX, 4), sT1, NW))
    a('buffer_load_dwordx3 %s, v%d, %s, s%d offen offset:912%s' % (vr(vX1 + 4, 3), vT2, sr(rX, 4), sT1, NW))
    stamp('wq issued')
    for k in range(4):
        a('v_mov_b32 v%d, -1' % (vR + k))
    a('s_lshl_b32 s%d, s%d, 3' % (sT2, sH))
    a('s_add_u32 s%d, s%d, s%d' % (sT2, sT2, sLI))
    a('s_lshl_b32 s%d, s%d, 10' % (sT2, sT2))
    a('s_lshl_b32 s%d, s%d, 8' % (sWQO, sR))
    a('s_add_u32 s%d, s%d, s%d' % (sT2, sT2, sWQO))
    a('s_add_u32 s%d, s%d, %d' % (sT2, sT2, QREG))
    a('v_lshlrev_b32 v%d, 5, v%d' % (vQA, vT1))
    a('v_bfe_u32 v%d, v%d, 4, 1' % (vT2, vL))
    a('v_lshl_add_u32 v%d, v%d, 4, v%d' % (vQA, vT2, vQA))
    a('v_lshrrev_b32 v%d, 5, v%d' % (vT2, vL))
    a('v_lshl_add_u32 v%d, v%d, 12, v%d' % (vQA, vT2, vQA))
    a('v_add_u32 v%d, s%d, v%d' % (vQA, sT2, vQA))
    a('s_mov_b32 exec_lo, 0x00ff00ff')
    a('s_mov_b32 exec_hi, 0x00ff00ff')
    (None if cfg['noclr'] else a('global_store_dwordx4 v%d, %s, %s sc1' % (vQA, vr(vR, 4), sr(pWS, 2)), tag='clr'))
    a('s_mov_b64 exec, -1')
    a('s_lshl_b32 s%d, s%d, 14' % (sWQO, sG))
    a('s_lshl_b32 s%d, s%d, 7' % (sT2, sC))
    a('s_add_u32 s%d, s%d, s%d' % (sT2, sT2, sWQO))
    a('v_lshlrev_b32 v48, 11, v%d' % vT0)
    a('v_lshl_add_u32 v48, v%d, 4, v48' % vT1)
    a('v_add_u32 v48, s%d, v48' % sT2)
    (None if cfg['noclr'] else a('global_store_dwordx4 v48, %s, %s sc1' % (vr(vR, 4), sr(pWS, 2)), tag='clr'))
    a('s_lshl_b32 s%d, s%d, 3' % (sT2, sC))
    a('s_add_u32 s%d, s%d, s%d' % (sT2, sT2, sWQO))
    a('s_add_u32 s%d, s%d, 1024' % (sT2, sT2))
    a('v_lshl_add_u32 v50, v%d, 11, s%d' % (vL, sT2))
    a('s_mov_b64 exec, 0xff')
    (None if cfg['noclr'] else a('global_store_dwordx2 v50, %s, %s sc1' % (vr(vR, 2), sr(pWS, 2)), tag='clr'))
    a('s_mov_b64 exec, -1')
    a('s_mul_i32 s%d, s%d, %d' % (sWQO, sB, YB))
    a('s_lshl_b32 s%d, s%d, 6' % (sT2, sN))
    a('s_add_u32 s%d, s%d, s%d' % (sWQO, sWQO, sT2))
    a('s_add_u32 s%d, s%d, %d' % (sWQO, sWQO, YREG))
    a('v_lshrrev_b32 v51, 2, v%d' % vL)
    a('v_and_b32 v52, 3, v%d' % vL)
    a('v_lshlrev_b32 v51, 13, v51')
    a('v_lshl_add_u32 v51, v52, 4, v51')
    a('v_add_u32 v51, s%d, v51' % sWQO)
    a('v_add_u32 v52, 0x20000, v51')
    (None if cfg['noclr'] else a('global_store_dwordx4 v51, %s, %s sc1' % (vr(vR, 4), sr(pWS, 2)), tag='clr'))
    a('s_mov_b32 exec_hi, 0xffff')
    (None if cfg['noclr'] else a('global_store_dwordx4 v52, %s, %s sc1' % (vr(vR, 4), sr(pWS, 2)), tag='clr'))
    a('s_mov_b64 exec, -1')
    stamp('clears issued')
    kv_prep()
    kv_srds()
    seq_upto(cfg['q0'])
    a('s_lshl_b32 s%d, s%d, 1' % (sT2, sH))
    a('s_add_u32 s%d, s%d, s%d' % (sT2, sT2, sB))
    a('s_lshl_b32 s%d, s%d, 12' % (sT2, sT2))
    a('s_add_u32 s%d, s%d, %d' % (sT2, sT2, QREG))
    a('v_add_u32 v%d, s%d, v%d' % (vQP, sT2, vO16))
    addr_block()
    A0, A1 = vACC, vACC + 8
    for m in range(7):
        A, B = wq_regs(m)
        for k in range(4):
            a('v_perm_b32 v%d, v%d, v%d, s%d' % (vT + 2 * k, B + k, A + k, sSELLO))
            a('v_perm_b32 v%d, v%d, v%d, s%d' % (vT + 2 * k + 1, B + k, A + k, sSELHI))
        if m == 0:
            stamp('first wq pair')
        for j in range(8):
            a('v_dot2_f32_bf16 v%d, v%d, v%d, %s' % (A0 + j, vT + j, vX0 + m, '0' if m == 0 else 'v%d' % (A0 + j)))
        for j in range(8):
            a('v_dot2_f32_bf16 v%d, v%d, v%d, %s' % (A1 + j, vT + j, vX1 + m, '0' if m == 0 else 'v%d' % (A1 + j)))
    for j in range(8):
        a('v_permlane32_swap_b32 v%d, v%d' % (A0 + j, A1 + j))
    for j in range(8):
        a('v_add_f32 v%d, v%d, v%d' % (A0 + j, A0 + j, A1 + j))
    for j in range(4):
        a('v_permlane16_swap_b32 v%d, v%d' % (A0 + j, A0 + j + 4))
    for j in range(4):
        a('v_add_f32 v%d, v%d, v%d' % (A0 + j, A0 + j, A0 + j + 4))
    for j in range(4):
        a('v_add_f32_dpp v%d, v%d, v%d row_ror:8 row_mask:0xf bank_mask:0xf' % (A0 + j, A0 + j, A0 + j))
    a('s_lshl_b32 s%d, s%d, 2' % (sT1, sG))
    a('s_add_u32 s%d, s%d, %d' % (sT1, sT1, CNT))
    a('v_mov_b32 v%d, s%d' % (vT0, sT1))
    a('v_mov_b32 v%d, 1' % vT1)
    a.wait_tag('clr')
    a('s_mov_b32 exec_lo, 0x00ff00ff')
    a('s_mov_b32 exec_hi, 0x00ff00ff')
    a('global_store_dwordx4 v%d, %s, %s sc1' % (vQA, vr(A0, 4), sr(pWS, 2)))
    a('s_mov_b64 exec, 1')
    if not cfg['noflag'] and cfg['fl'] == 'atomic':
        a('global_atomic_add v%d, v%d, %s' % (vT0, vT1, sr(pDBG, 2)))
    if not cfg['noflag'] and cfg['fl'] == 'byte':
        a('v_mov_b32 v%d, s2' % vT0)
        a('global_store_byte v%d, v%d, %s sc1' % (vT0, vT1, sr(pDBG, 2)))
    a('s_mov_b64 exec, -1')
    stamp('q tile published')
    seq_upto(cfg['q1'], cfg['thr0'])
    a('v_and_b32 v%d, 1, v%d' % (vT0, vL))
    a('s_lshl_b32 s%d, s%d, 2' % (sT1, sH))
    a('s_add_u32 s%d, s%d, %d' % (sT1, sT1, CNT))
    a('v_lshl_add_u32 v%d, v%d, 6, s%d' % (vT2, vT0, sT1))
    if not (cfg['noflag'] or cfg['nocnt']):
        a('global_load_dword v%d, v%d, %s sc1' % (vT1, vT2, sr(pDBG, 2)))
    seq_upto(cfg['q2'], cfg['thr0'])
    if cfg['stamps']:
        a('v_mov_b32 v%d, v%d' % (vT1, vT1))
        stamp('q cnt sampled')
    a('v_cmp_ne_u32 vcc, 8, v%d' % vT1)
    if cfg['nochk'] or cfg['noflag'] or cfg['nowait']:
        a('s_mov_b64 vcc, 0')
    a.save('qchk')
    a('s_cbranch_vccnz L_QCHK_SLOW')
    a.label('L_QCHK_OK')
    stamp('q counters ok')
    for k in range(4):
        a('global_load_dwordx4 %s, v%d, %s offset:%d sc1' % (vr(vT + 4 * k, 4), vQP, sr(pWS, 2), 1024 * k))
    seq_upto(cfg['q3'] or pre, cfg['thr0'])
    a('v_max3_u32 v44, v48, v49, v50')
    a('v_max3_u32 v45, v51, v52, v53')
    a('v_max3_u32 v46, v54, v55, v56')
    a('v_max3_u32 v47, v57, v58, v59')
    a('v_max3_u32 v44, v44, v60, v61')
    a('v_max3_u32 v45, v45, v62, v63')
    a('v_max3_u32 v44, v44, v46, v47')
    a('v_max_u32 v44, v44, v45')
    a('v_cmp_eq_u32 vcc, -1, v44')
    stamp('q data sampled')
    a.save('qpoll')
    a('s_cbranch_vccnz L_QPOLL_SLOW')
    a.label('L_QPOLL_OK')
    for j in range(4):
        a('v_add_f32 v%d, v%d, v%d' % (48 + j, 48 + j, 52 + j))
        a('v_add_f32 v%d, v%d, v%d' % (56 + j, 56 + j, 60 + j))
    for j in range(4):
        a('v_add_f32 v%d, v%d, v%d' % (48 + j, 48 + j, 56 + j))
    a('v_cvt_pk_bf16_f32 v48, v48, v49')
    a('v_cvt_pk_bf16_f32 v49, v50, v51')
    a('v_lshlrev_b32 v%d, 3, v%d' % (vT0, vL))
    a('ds_write_b64 v%d, v[48:49] offset:%d' % (vT0, QB))
    stamp('q gathered')
    if cfg['prio']:
        a('s_setprio 0')
    seq_upto(pre, cfg['thr0'])
    a('s_waitcnt lgkmcnt(0)')
    assert seq[0] == pre

    a.label('L_B1')
    if not (cfg['thr'] and pre - cfg['q2'] >= max(cfg['thr'], cfg['thr0'])):
        assert not cfg['thr']
        a.restore('b1')
    a('s_barrier')
    stamp('B1')
    a('v_and_b32 v%d, 31, v%d' % (vT0, vL))
    a('v_lshlrev_b32 v%d, 4, v%d' % (vT0, vT0))
    a('ds_read_b128 %s, v%d offset:%d' % (vr(vQ, 4), vT0, QB))
    seq_upto(32)

    a.c('K phase')
    pool = [24, 25, 26, 27, 28, 29, 30, 56, 57, 58, 59, 60, 61, 62, 63, 48, 49, 50, 51, 52, 53, 54, 55]
    if not cfg['stamps']:
        pool.append(31)
    levels = {1: [], 2: [], 3: [], 4: [], 5: []}

    def merge(level, x, y):
        if level == 1:
            d = pool.pop(0)
            a('v_add_f32_dpp v%d, v%d, v%d row_ror:8 row_mask:0xf bank_mask:0x3' % (d, x, x))
            a('v_add_f32_dpp v%d, v%d, v%d row_ror:8 row_mask:0xf bank_mask:0xc' % (d, y, y))
            pool.extend([x, y])
            return d
        if level == 2:
            d = pool.pop(0)
            a('v_add_f32_dpp v%d, v%d, v%d row_shl:4 row_mask:0xf bank_mask:0x5' % (d, x, x))
            a('v_add_f32_dpp v%d, v%d, v%d row_shr:4 row_mask:0xf bank_mask:0xa' % (d, y, y))
            pool.extend([x, y])
            return d
        qp = '[2,3,0,1]' if level == 3 else '[1,0,3,2]'
        msk = sM1 if level == 3 else sM0
        a('v_add_f32_dpp v%d, v%d, v%d quad_perm:%s row_mask:0xf bank_mask:0xf' % (x, x, x, qp))
        a('v_add_f32_dpp v%d, v%d, v%d quad_perm:%s row_mask:0xf bank_mask:0xf' % (y, y, y, qp))
        a('v_cndmask_b32_e64 v%d, v%d, v%d, %s' % (x, x, y, sr(msk, 2)))
        pool.append(y)
        return x

    def tree_step(gap, flush=False):
        for level in (4, 3, 2, 1):
            L = levels[level]
            while len(L) >= 2 and (flush or (L[0][1] < gap and L[1][1] < gap)):
                x = L.pop(0)[0]
                y = L.pop(0)[0]
                levels[level + 1].append((merge(level, x, y), gap))
                if not flush:
                    break

    v0 = max(0, seq[0] - 32)
    for j in range(16):
        t0, t1 = 2 * j, 2 * j + 1
        x = pool.pop(0)
        y = pool.pop(0)
        for k in range(4):
            a('v_dot2_f32_bf16 v%d, v%d, v%d, %s' % (x, slot(t0) + k, vQ + k, '0' if k == 0 else 'v%d' % x))
            a('v_dot2_f32_bf16 v%d, v%d, v%d, %s' % (y, slot(t1) + k, vQ + k, '0' if k == 0 else 'v%d' % y))
        if cfg['nvk'] > v0:
            v_upto(min(v0 + ((cfg['nvk'] - v0) * (j + 1) + 15) // 16, 16 + min(2 * j + 2, 16)))
        tree_step(j)
        a('v_permlane16_swap_b32 v%d, v%d' % (x, y))
        a('v_add_f32 v%d, v%d, v%d' % (x, x, y))
        pool.append(y)
        levels[1].append((x, j))
        if j in (0, 7):
            stamp('K pair %d' % j)
    for g in range(16, 24):
        tree_step(g)
    assert len(levels[5]) == 1 and not any(levels[l] for l in (1, 2, 3, 4)), levels
    vS = levels[5][0][0]
    stamp('K done')
    vM = 54
    vE, vTM = 28, 29

    rnd_bf16(30, vS)
    vS = 30
    a('v_mov_b32 v%d, v%d' % (vM, vS))
    allred('v_max_f32', vM, vTM)
    a('s_lshl_b32 s%d, s%d, 2' % (sT1, sW))
    a('s_add_u32 s%d, s%d, %d' % (sT1, sT1, MX))
    a('v_mov_b32 v%d, s%d' % (vT0, sT1))
    a('v_sub_f32 v%d, v%d, v%d' % (vE, vS, vM))
    a('v_mul_f32 v%d, %s, v%d' % (vE, CS, vE))
    a('v_exp_f32 v%d, v%d' % (vE, vE))
    a('ds_write_b32 v%d, v%d' % (vT0, vM))
    a('v_mov_b32 v%d, v%d' % (vS, vE))
    a('v_mov_b32 v%d, v%d' % (vTM, vE))
    a('v_permlane16_swap_b32 v%d, v%d' % (vS, vTM))
    a('v_cvt_pk_bf16_f32 v%d, v%d, v%d' % (vS, vS, vTM))

    def rev4(x):
        return ((x & 1) << 3) | ((x & 2) << 1) | ((x & 4) >> 1) | ((x & 8) >> 3)
    for u in range(16):
        a('ds_swizzle_b32 v%d, v%d offset:%d' % (vPP + u, vS, rev4(u) << 5))
    allred('v_add_f32', vE, vTM)
    a('ds_write_b32 v%d, v%d offset:%d' % (vT0, vE, LW - MX))
    stamp('softmax done')
    a('s_cmp_eq_u32 s%d, 7' % sW)
    a.save('roles')
    seq_roles = seq[0]
    a('s_cbranch_scc1 L_PWAVE')

    def v_phase(side):
        a.c('V phase')
        lead = max(cfg['win'], seq[0] - 32) if cfg['vstep'] else cfg['win']
        for u in range(16):
            v_upto(2 * u + lead, cfg['thr_v'])
            A, B = vslot(2 * u), vslot(2 * u + 1)
            for k in range(4):
                a('v_perm_b32 v%d, v%d, v%d, s%d' % (vU + 2 * k, B + k, A + k, sSELLO))
                a('v_perm_b32 v%d, v%d, v%d, s%d' % (vU + 2 * k + 1, B + k, A + k, sSELHI))
            for j in range(8):
                c = '0' if u == 0 else 'v%d' % (vACC + j)
                a('v_dot2_f32_bf16 v%d, v%d, v%d, %s' % (vACC + j, vU + j, vPP + u, c))
            for f in side.get(u, []):
                f()
            if u in (0, 7):
                stamp('V pair %d' % u)
        stamp('V done')

    def o_reduce():
        for j in range(4):
            a('v_permlane32_swap_b32 v%d, v%d' % (vACC + j, vACC + j + 4))
        for j in range(4):
            a('v_add_f32 v%d, v%d, v%d' % (vR + j, vACC + j, vACC + j + 4))
        a('ds_write_b128 v%d, %s' % (vLOW, vr(vR, 4)))
        a('v_and_b32 v%d, 7, v%d' % (vT0, vL))
        a('v_lshlrev_b32 v%d, 2, v%d' % (vT0, vT0))
        a('s_waitcnt lgkmcnt(0)')
        a('s_barrier')
        stamp('B3')
        vO = 48
        a('ds_read_b32 v52, v%d offset:%d' % (vT0, MX))
        a('ds_read_b32 v%d, v%d offset:%d' % (vM + 1, vT0, LW))
        a('ds_read_b128 %s, v%d' % (vr(vO, 4), vLOR))
        a('v_max_f32_dpp v%d, v52, v52 quad_perm:[1,0,3,2] row_mask:0xf bank_mask:0xf' % vM)
        a('v_max_f32_dpp v%d, v%d, v%d quad_perm:[2,3,0,1] row_mask:0xf bank_mask:0xf' % (vM, vM, vM))
        a('v_max_f32_dpp v%d, v%d, v%d row_half_mirror row_mask:0xf bank_mask:0xf' % (vM, vM, vM))
        a('v_sub_f32 v53, v52, v%d' % vM)
        a('v_mul_f32 v53, %s, v53' % CS)
        a('v_exp_f32 v53, v53')
        five = [vM + 1, vO, vO + 1, vO + 2, vO + 3]
        for r in five:
            a('v_mul_f32 v%d, v%d, v53' % (r, r))
        for ctl in ('quad_perm:[1,0,3,2]', 'quad_perm:[2,3,0,1]', 'row_half_mirror'):
            for r in five:
                a('v_add_f32_dpp v%d, v%d, v%d %s row_mask:0xf bank_mask:0xf' % (r, r, r, ctl))
        a('s_mov_b32 exec_lo, 0x01010101')
        a('s_mov_b32 exec_hi, 0x01010101')
        a('global_store_dwordx4 v%d, %s, %s sc1' % (vAO, vr(vO, 4), sr(pWS, 2)))
        a('s_mov_b64 exec, 1')
        a('global_store_dwordx2 v%d, %s, %s sc1' % (vAML, vr(vM, 2), sr(pWS, 2)))
        a('s_mov_b64 exec, -1')
        stamp('o published')
        if cfg['stop'] == 'pub':
            a('s_branch L_FIN')

    vHP = vXW1

    def m_setup():
        a.c('w1 / w2 / wo descriptors')
        a('s_mul_i32 s%d, s%d, %d' % (sT1, sW, 64 * 3584))
        a('s_lshl_b32 s%d, s%d, 5' % (sT2, sSL))
        a('s_add_u32 s%d, s%d, s%d' % (sT1, sT1, sT2))
        a('s_and_b32 s%d, s%d, %d' % (sWQO, sVAL, 63 * 3584 + 32))
        srd(rW1, pW1, sT1, 's%d' % sWQO)
        a('s_and_b32 s%d, s%d, 32' % (sWQO, sVAL))
        srd(rB1, pB1, sT2, 's%d' % sWQO)
        a('s_mul_i32 s%d, s%d, %d' % (sT1, sSL, 16 * 896))
        a('s_lshl_b32 s%d, s%d, 7' % (sT2, sW))
        a('s_add_u32 s%d, s%d, s%d' % (sT1, sT1, sT2))
        a('s_and_b32 s%d, s%d, %d' % (sWQO, sVAL, 15 * 896 + 128))
        srd(rW2, pW2, sT1, 's%d' % sWQO)
        a('s_lshl_b32 s%d, s%d, 8' % (sT1, sH))
        a('s_lshl_b32 s%d, s%d, 5' % (sWQO, sC))
        a('s_add_u32 s%d, s%d, s%d' % (sT1, sT1, sWQO))
        a('s_mul_i32 s%d, s%d, 896' % (sT1, sT1))
        a('s_add_u32 s%d, s%d, s%d' % (sT1, sT1, sT2))
        srd(rWO, pWO, sT1, str(31 * 896 + 128))
        a('s_mul_i32 s%d, s%d, 896' % (sT1, sB))
        a('s_add_u32 s%d, s%d, s%d' % (sT1, sT1, sT2))
        srd(rX, pX, sT1, '128')

    def ld_w1():
        a('v_and_b32 v%d, 31, v%d' % (vT0, vL))
        a('v_mul_u32_u24 v%d, 7168, v%d' % (vT1, vT0))
        a('v_lshrrev_b32 v%d, 5, v%d' % (vT2, vL))
        a('v_lshl_add_u32 v%d, v%d, 4, v%d' % (vT1, vT2, vT1))
        a('v_lshlrev_b32 v%d, 2, v%d' % (vT0, vT0))
        a('buffer_load_dword v%d, v%d, %s, 0 offen%s' % (vXW1, vT0, sr(rX, 4), NW))
        a('buffer_load_dwordx4 %s, v%d, %s, 0 offen%s' % (vr(vW1, 4), vT1, sr(rW1, 4), NW1))
        a('buffer_load_dwordx4 %s, v%d, %s, 0 offen offset:3584%s' % (vr(vW1 + 4, 4), vT1, sr(rW1, 4), NW1))

    def ld_w2():
        a('v_lshrrev_b32 v%d, 3, v%d' % (vT0, vL))
        a('v_and_b32 v%d, 7, v%d' % (vT1, vL))
        a('v_lshlrev_b32 v%d, 4, v%d' % (vT1, vT1))
        a('v_lshlrev_b32 v%d, 2, v%d' % (vT2, vT0))
        a('buffer_load_dword v%d, v%d, %s, 0 offen%s' % (vB1, vT2, sr(rB1, 4), NW))
        a('v_mul_u32_u24 v%d, 1792, v%d' % (vT2, vT0))
        a('v_add_u32 v%d, v%d, v%d' % (vT2, vT2, vT1))
        a('buffer_load_dwordx4 %s, v%d, %s, 0 offen%s' % (vr(vW2, 4), vT2, sr(rW2, 4), NW2))
        a('buffer_load_dwordx4 %s, v%d, %s, 0 offen offset:896%s' % (vr(vW2 + 4, 4), vT2, sr(rW2, 4), NW2))

    def ld_wo():
        a('v_lshrrev_b32 v%d, 3, v%d' % (vT0, vL))
        a('v_and_b32 v%d, 7, v%d' % (vT1, vL))
        a('v_lshlrev_b32 v%d, 4, v%d' % (vT1, vT1))
        a('v_mul_u32_u24 v%d, 3584, v%d' % (vT2, vT0))
        a('v_add_u32 v%d, v%d, v%d' % (vT2, vT2, vT1))
        for k in range(4):
            a('buffer_load_dwordx4 %s, v%d, %s, 0 offen offset:%d%s' % (vr(vWO + 4 * k, 4), vT2, sr(rWO, 4), 896 * k, NWO))

    def do_hp():
        a.c('h partial')
        tp = vT
        for k in range(4):
            a('v_perm_b32 v%d, v%d, v%d, s%d' % (tp + 2 * k, vW1 + 4 + k, vW1 + k, sSELLO))
            a('v_perm_b32 v%d, v%d, v%d, s%d' % (tp + 2 * k + 1, vW1 + 4 + k, vW1 + k, sSELHI))
        for j in range(8):
            a('v_dot2_f32_bf16 v%d, v%d, v%d, 0' % (vW1 + j, tp + j, vXW1))
        for j in range(4):
            a('v_permlane16_swap_b32 v%d, v%d' % (vW1 + j, vW1 + j + 4))
        for j in range(4):
            a('v_add_f32 v%d, v%d, v%d' % (vW1 + j, vW1 + j, vW1 + j + 4))
        for j in range(2):
            a('v_add_f32_dpp v%d, v%d, v%d row_ror:8 row_mask:0xf bank_mask:0x3' % (vW1 + 4 + j, vW1 + j, vW1 + j))
            a('v_add_f32_dpp v%d, v%d, v%d row_ror:8 row_mask:0xf bank_mask:0xc' % (vW1 + 4 + j, vW1 + 2 + j, vW1 + 2 + j))
        a('v_add_f32_dpp v%d, v%d, v%d row_shl:4 row_mask:0xf bank_mask:0x5' % (vW1, vW1 + 4, vW1 + 4))
        a('v_add_f32_dpp v%d, v%d, v%d row_shr:4 row_mask:0xf bank_mask:0xa' % (vW1, vW1 + 5, vW1 + 5))
        a('v_add_f32_dpp v%d, v%d, v%d quad_perm:[2,3,0,1] row_mask:0xf bank_mask:0xf' % (vW1, vW1, vW1))
        a('v_add_f32_dpp v%d, v%d, v%d quad_perm:[1,0,3,2] row_mask:0xf bank_mask:0xf' % (vW1, vW1, vW1))
        a('s_lshl_b32 s%d, s%d, 6' % (sT1, sW))
        a('s_add_u32 s%d, s%d, %d' % (sT1, sT1, HB))
        a('v_and_b32 v%d, 0x3c, v%d' % (vT1, vL))
        a('v_add_u32 v%d, s%d, v%d' % (vT1, sT1, vT1))
        a('ds_write_b32 v%d, v%d' % (vT1, vW1))

    def do_ffn1():
        a.c('ffn: hidden units')
        a('v_lshrrev_b32 v%d, 3, v%d' % (vT0, vL))
        a('v_lshlrev_b32 v%d, 3, v%d' % (vT0, vT0))
        regs = [64 + 2 * k for k in range(7)]
        for k in range(7):
            a('ds_read_b64 %s, v%d offset:%d' % (vr(regs[k], 2), vT0, HB + 64 * k))
        a('v_mov_b32 v%d, %d' % (vT1, OMB))
        a('ds_read_b32 v%d, v%d' % (vOMG, vT1))
        for x_, y_ in ((0, 1), (2, 3), (4, 5), (0, 2), (4, 6), (0, 4)):
            for j in range(2):
                a('v_add_f32 v%d, v%d, v%d' % (regs[x_] + j, regs[x_] + j, regs[y_] + j))
        h0, h1 = regs[0], regs[0] + 1
        t0_, t1_ = vU, vU + 1
        a('v_cvt_pk_bf16_f32 v%d, v%d, v%d' % (t0_, h0, h1))
        a('v_lshlrev_b32 v%d, 16, v%d' % (h0, t0_))
        a('v_and_b32 v%d, 0xffff0000, v%d' % (h1, t0_))
        a('v_lshlrev_b32 v%d, 16, v%d' % (t0_, vB1))
        a('v_and_b32 v%d, 0xffff0000, v%d' % (t1_, vB1))
        a('v_add_f32 v%d, v%d, v%d' % (h0, h0, t0_))
        a('v_add_f32 v%d, v%d, v%d' % (h1, h1, t1_))
        a('v_cvt_pk_bf16_f32 v%d, v%d, v%d' % (t0_, h0, h1))
        a('v_lshlrev_b32 v%d, 16, v%d' % (h0, t0_))
        a('v_and_b32 v%d, 0xffff0000, v%d' % (h1, t0_))
        C1 = -2.0 * LOG2E * 0.7978845608028654
        C2 = C1 * 0.044715
        a('s_mov_b32 s%d, %s' % (sT1, f2h(C2)))
        a('s_mov_b32 s%d, %s' % (sT2, f2h(C1)))
        for hh, tt in ((h0, t0_), (h1, t1_)):
            a('v_mul_f32 v%d, v%d, v%d' % (tt, hh, hh))
        for hh, tt in ((h0, t0_), (h1, t1_)):
            a('v_mul_f32 v%d, s%d, v%d' % (tt, sT1, tt))
        for hh, tt in ((h0, t0_), (h1, t1_)):
            a('v_add_f32 v%d, s%d, v%d' % (tt, sT2, tt))
        for hh, tt in ((h0, t0_), (h1, t1_)):
            a('v_mul_f32 v%d, v%d, v%d' % (tt, tt, hh))
        for hh, tt in ((h0, t0_), (h1, t1_)):
            a('v_exp_f32 v%d, v%d' % (tt, tt))
        for hh, tt in ((h0, t0_), (h1, t1_)):
            a('v_add_f32 v%d, 1.0, v%d' % (tt, tt))
        for hh, tt in ((h0, t0_), (h1, t1_)):
            a('v_rcp_f32 v%d, v%d' % (tt, tt))
        for hh, tt in ((h0, t0_), (h1, t1_)):
            a('v_mul_f32 v%d, v%d, v%d' % (hh, hh, tt))
        a('v_cvt_pk_bf16_f32 v%d, v%d, v%d' % (vHP, h0, h1))

    def do_ffn2():
        for k in range(4):
            a('v_perm_b32 v%d, v%d, v%d, s%d' % (vU + 2 * k, vW2 + 4 + k, vW2 + k, sSELLO))
            a('v_perm_b32 v%d, v%d, v%d, s%d' % (vU + 2 * k + 1, vW2 + 4 + k, vW2 + k, sSELHI))
        for j in range(8):
            a('v_dot2_f32_bf16 v%d, v%d, v%d, 0' % (vACCF + j, vU + j, vHP))
        for j in range(8):
            a('v_mul_f32 v%d, v%d, v%d' % (vACCF + j, vACCF + j, vOMG))

    WP = [[None] * 8, [None] * 8]

    def do_wop():
        a.c('wo pre-permute')
        spare = vW1
        for p in range(2):
            A, B = vWO + 8 * p, vWO + 8 * p + 4
            for k in range(4):
                a('v_perm_b32 v%d, v%d, v%d, s%d' % (spare, B + k, A + k, sSELLO))
                a('v_perm_b32 v%d, v%d, v%d, s%d' % (B + k, B + k, A + k, sSELHI))
                WP[p][2 * k] = spare
                WP[p][2 * k + 1] = B + k
                spare = A + k

    m_setup()
    side = {}
    for key, f in (('p_w1', ld_w1), ('p_w2', ld_w2), ('p_wo', ld_wo), ('p_hp', do_hp)):
        if cfg[key] < 0:
            f()
        else:
            side.setdefault(cfg[key], []).append(f)
    v_phase(side)
    o_reduce()
    do_ffn1()
    do_wop()
    do_ffn2()
    a('v_lshrrev_b32 v%d, 3, v%d' % (vT0, vL))
    a('v_lshlrev_b32 v%d, 3, v%d' % (vT0, vT0))
    a('s_barrier')
    a('ds_read_b64 v[74:75], v%d offset:%d' % (vT0, OCB))
    for j in range(8):
        a('v_dot2_f32_bf16 v%d, v%d, v74, v%d' % (vACCF + j, WP[0][j], vACCF + j))
    for j in range(8):
        a('v_dot2_f32_bf16 v%d, v%d, v75, v%d' % (vACCF + j, WP[1][j], vACCF + j))
    y = vACCF
    for j in range(4):
        a('v_permlane32_swap_b32 v%d, v%d' % (y + j, y + j + 4))
    for j in range(4):
        a('v_add_f32 v%d, v%d, v%d' % (y + j, y + j, y + j + 4))
    a('v_permlane16_swap_b32 v%d, v%d' % (y, y + 2))
    a('v_permlane16_swap_b32 v%d, v%d' % (y + 1, y + 3))
    a('v_add_f32 v%d, v%d, v%d' % (y, y, y + 2))
    a('v_add_f32 v%d, v%d, v%d' % (y + 1, y + 1, y + 3))
    a('v_add_f32_dpp v%d, v%d, v%d row_ror:8 row_mask:0xf bank_mask:0xf' % (y, y, y))
    a('v_add_f32_dpp v%d, v%d, v%d row_ror:8 row_mask:0xf bank_mask:0xf' % (y + 1, y + 1, y + 1))
    a('s_mov_b32 exec_lo, 0x00ff00ff')
    a('s_mov_b32 exec_hi, 0x00ff00ff')
    a('global_store_dwordx2 v%d, %s, %s sc1' % (vAY, vr(y, 2), sr(pWS, 2)))
    a('s_mov_b64 exec, -1')
    stamp('y published')
    a('s_branch L_FIN')

    a.label('L_PWAVE')
    a.restore('roles')
    seq[0] = seq_roles
    vB2F = 24

    def ld_gate():
        a('s_mul_i32 s%d, s%d, 896' % (sT1, sB))
        srd(rX, pX, sT1, '896')
        srd(rG, pG, None, '896')
        srd(rB2, pB2, None, '896')
        a('buffer_load_dwordx4 %s, v%d, %s, 0 offen%s' % (vr(vXG, 4), vO16, sr(rX, 4), NW))
        a('buffer_load_dwordx4 %s, v%d, %s, 0 offen%s' % (vr(vGW, 4), vO16, sr(rG, 4), NW))
        a('s_min_u32 s%d, s%d, 27' % (sT1, sN))
        a('s_lshl_b32 s%d, s%d, 5' % (sT1, sT1))
        a('v_lshrrev_b32 v%d, 4, v%d' % (vT0, vL))
        a('v_lshlrev_b32 v%d, 3, v%d' % (vT0, vT0))
        a('buffer_load_dwordx2 %s, v%d, %s, s%d offen%s' % (vr(vB2, 2), vT0, sr(rB2, 4), sT1, NW))

    def do_gate():
        a.c('gate')
        ta, tb, tc, td = vT, vT + 1, vT + 2, vT + 3
        vZ = vT + 4
        a('s_mov_b32 s%d, 0x3f803f80' % sT2)
        for k in range(4):
            a('v_lshlrev_b32 v%d, 16, v%d' % (ta, vXG + k))
            a('v_lshlrev_b32 v%d, 16, v%d' % (tb, vGW + k))
            a('v_and_b32 v%d, 0xffff0000, v%d' % (tc, vXG + k))
            a('v_and_b32 v%d, 0xffff0000, v%d' % (td, vGW + k))
            a('v_mul_f32 v%d, v%d, v%d' % (ta, ta, tb))
            a('v_mul_f32 v%d, v%d, v%d' % (tc, tc, td))
            a('v_cvt_pk_bf16_f32 v%d, v%d, v%d' % (ta, ta, tc))
            a('v_dot2_f32_bf16 v%d, v%d, s%d, %s' % (vZ, ta, sT2, '0' if k == 0 else 'v%d' % vZ))
        allred('v_add_f32', vZ, ta)
        rnd_bf16(vZ, vZ)
        a('v_mul_f32 v%d, %s, v%d' % (vZ, f2h(-LOG2E), vZ))
        a('v_exp_f32 v%d, v%d' % (vZ, vZ))
        a('v_add_f32 v%d, 1.0, v%d' % (vZ, vZ))
        a('v_rcp_f32 v%d, v%d' % (vZ, vZ))
        rnd_bf16(vG, vZ)
        a('v_sub_f32 v%d, 1.0, v%d' % (vOMG, vG))
        rnd_bf16(vOMG, vOMG)
        a('v_mov_b32 v%d, %d' % (vT0, OMB))
        a('ds_write_b32 v%d, v%d' % (vT0, vOMG))
        a('v_lshlrev_b32 v%d, 16, v%d' % (vB2F, vB2))
        a('v_and_b32 v%d, 0xffff0000, v%d' % (vB2F + 1, vB2))
        a('v_lshlrev_b32 v%d, 16, v%d' % (vB2F + 2, vB2 + 1))
        a('v_and_b32 v%d, 0xffff0000, v%d' % (vB2F + 3, vB2 + 1))
        for j in range(4):
            a('v_mul_f32 v%d, v%d, v%d' % (vB2F + j, vB2F + j, vOMG))

    def ld_chk():
        a('v_and_b32 v%d, 15, v%d' % (vT0, vL))
        a('s_lshl_b32 s%d, s%d, 4' % (sT1, sB))
        a('s_add_u32 s%d, s%d, %d' % (sT1, sT1, CNT // 4))
        a('v_add_u32 v%d, s%d, v%d' % (vT0, sT1, vT0))
        a('v_lshlrev_b32 v%d, 2, v%d' % (vSPARE, vT0))
        if not (cfg['noflag'] or cfg['nocnt']):
            a('global_load_dword v%d, v%d, %s sc1' % (vCHK, vSPARE, sr(pDBG, 2)))

    side = {}
    for key, f in (('p_g', ld_gate), ('chk_u', ld_chk), ('p_gc', do_gate)):
        if cfg[key] < 0:
            f()
        else:
            side.setdefault(cfg[key], []).append(f)
    v_phase(side)
    o_reduce()
    a('v_cmp_ne_u32 vcc, 8, v%d' % vCHK)
    if cfg['noflag'] or cfg['nowait']:
        a('s_mov_b64 vcc, 0')
    a.save('chk')
    a('s_cbranch_vccnz L_CHK_SLOW')
    a.label('L_CHK_OK')

    a.c('hop 1')
    a('s_mov_b32 s%d, %d' % (sSPIN, cfg['spin']))
    vPo, vPm = 64, 68
    a.label('L_POLL1')
    a('global_load_dwordx4 %s, v%d, %s sc1' % (vr(vPo, 4), vPO, sr(pWS, 2)))
    a('global_load_dwordx2 %s, v%d, %s sc1' % (vr(vPm, 2), vPML, sr(pWS, 2)))
    a('s_sub_u32 s%d, s%d, 1' % (sSPIN, sSPIN))
    a('s_cmp_eq_u32 s%d, 0' % sSPIN)
    a('s_waitcnt vmcnt(0)')
    a('s_cbranch_scc1 L_POLL1_DONE')
    a('v_max3_u32 v70, v64, v65, v66')
    a('v_max3_u32 v71, v67, v68, v69')
    a('v_max_u32 v70, v70, v71')
    a('v_cmp_eq_u32 vcc, -1, v70')
    a('s_cbranch_vccnz L_POLL1')
    a.label('L_POLL1_DONE')
    a('s_nop 0')
    stamp('hop1 data')
    m, l, Mx, w_, L_ = 68, 69, 70, 71, 72
    a('v_max_f32_dpp v%d, v%d, v%d quad_perm:[1,0,3,2] row_mask:0xf bank_mask:0xf' % (Mx, m, m))
    a('v_max_f32_dpp v%d, v%d, v%d quad_perm:[2,3,0,1] row_mask:0xf bank_mask:0xf' % (Mx, Mx, Mx))
    a('v_max_f32_dpp v%d, v%d, v%d row_half_mirror row_mask:0xf bank_mask:0xf' % (Mx, Mx, Mx))
    a('v_sub_f32 v%d, v%d, v%d' % (w_, m, Mx))
    a('v_mul_f32 v%d, %s, v%d' % (w_, CS, w_))
    a('v_exp_f32 v%d, v%d' % (w_, w_))
    a('v_mul_f32 v%d, v%d, v%d' % (L_, l, w_))
    for j in range(4):
        a('v_mul_f32 v%d, v%d, v%d' % (vPo + j, vPo + j, w_))
    five = [L_, vPo, vPo + 1, vPo + 2, vPo + 3]
    for ctl in ('quad_perm:[1,0,3,2]', 'quad_perm:[2,3,0,1]', 'row_half_mirror'):
        for r in five:
            a('v_add_f32_dpp v%d, v%d, v%d %s row_mask:0xf bank_mask:0xf' % (r, r, r, ctl))
    a('v_rcp_f32 v%d, v%d' % (L_, L_))
    a('v_mul_f32 v%d, v%d, v%d' % (L_, L_, vG))
    for j in range(4):
        a('v_mul_f32 v%d, v%d, v%d' % (vPo + j, vPo + j, L_))
    a('v_cvt_pk_bf16_f32 v74, v%d, v%d' % (vPo, vPo + 1))
    a('v_cvt_pk_bf16_f32 v75, v%d, v%d' % (vPo + 2, vPo + 3))
    a('v_lshrrev_b32 v%d, 3, v%d' % (vT0, vL))
    a('v_lshlrev_b32 v%d, 3, v%d' % (vT0, vT0))
    a('s_mov_b32 exec_lo, 0x01010101')
    a('s_mov_b32 exec_hi, 0x01010101')
    a('ds_write_b64 v%d, v[74:75] offset:%d' % (vT0, OCB))
    a('s_mov_b64 exec, -1')
    a('s_waitcnt lgkmcnt(0)')
    a('s_barrier')
    stamp('B4')
    a('s_cmp_ge_u32 s%d, 28' % sN)
    a('s_cbranch_scc1 L_FIN')
    a('s_mov_b32 s%d, %d' % (sSPIN, cfg['spin']))
    a('v_add_u32 v%d, 4096, v%d' % (vT0, vPY))
    a.label('L_POLL2')
    for k in range(8):
        a('global_load_dwordx4 %s, v%d, %s offset:%d sc1' % (vr(64 + 4 * k, 4), vPY if k < 4 else vT0, sr(pWS, 2), (k % 4) * 1024))
    a('s_sub_u32 s%d, s%d, 1' % (sSPIN, sSPIN))
    a('s_cmp_eq_u32 s%d, 0' % sSPIN)
    a('s_waitcnt vmcnt(0)')
    a('s_cbranch_scc1 L_POLL2_DONE')
    a('v_max3_u32 v100, v64, v65, v66')
    a('v_max3_u32 v101, v67, v68, v69')
    for k in range(70, 94, 4):
        a('v_max3_u32 v100, v100, v%d, v%d' % (k, k + 1))
        a('v_max3_u32 v101, v101, v%d, v%d' % (k + 2, k + 3))
    a('v_max3_u32 v100, v100, v94, v95')
    a('v_max_u32 v100, v100, v101')
    a('v_cmp_eq_u32 vcc, -1, v100')
    a('s_cbranch_vccnz L_POLL2')
    a.label('L_POLL2_DONE')
    a('s_nop 0')
    stamp('hop2 data')
    for step in (16, 8, 4):
        for base in range(64, 64 + step, 4):
            for j in range(4):
                a('v_add_f32 v%d, v%d, v%d' % (base + j, base + j, base + step + j))
    for n in (8, 4, 2, 1):
        for j in range(4):
            a('v_add_f32_dpp v%d, v%d, v%d row_ror:%d row_mask:0xf bank_mask:0xf' % (64 + j, 64 + j, 64 + j, n))
    for j in range(4):
        a('v_add_f32 v%d, v%d, v%d' % (64 + j, 64 + j, vB2F + j))
    a('v_cvt_pk_bf16_f32 v64, v64, v65')
    a('v_cvt_pk_bf16_f32 v65, v66, v67')
    a('s_mul_i32 s%d, s%d, 896' % (sT1, sB))
    a('s_lshl_b32 s%d, s%d, 5' % (sT2, sN))
    a('s_add_u32 s%d, s%d, s%d' % (sT1, sT1, sT2))
    a('v_lshrrev_b32 v%d, 4, v%d' % (vT0, vL))
    a('v_lshl_add_u32 v%d, v%d, 3, s%d' % (vT0, vT0, sT1))
    a('s_mov_b32 exec_lo, 0x00010001')
    a('s_mov_b32 exec_hi, 0x00010001')
    a('global_store_dwordx2 v%d, v[64:65], %s' % (vT0, sr(pOUT, 2)))
    a('s_mov_b64 exec, -1')
    stamp('out stored')

    a.label('L_FIN')
    if cfg['stamps']:
        a('s_nop 4')
        a('s_memrealtime s[100:101]')
        a('s_waitcnt lgkmcnt(0)')
        a('v_writelane_b32 v31, s100, 63')
        a('s_lshl_b32 s94, s2, 3')
        a('s_add_u32 s94, s94, s%d' % sW)
        a('s_lshl_b32 s94, s94, 8')
        a('s_add_u32 s94, s94, %d' % STREG)
        a('v_lshl_add_u32 v30, v%d, 2, s94' % vL)
        a('global_store_dword v30, v31, %s' % sr(pWS, 2))
        if cfg['dbgtime']:
            sel = cfg['dbgtime']
            a('s_add_u32 s94, s%d, 1' % sW)
            a('s_and_b32 s94, s94, 7')
            a('s_cmp_gt_u32 s94, 1')
            a('s_cbranch_scc1 L_NODBG')
            a('v_mov_b32 v29, 0')
            for i, nm in enumerate(sel):
                src = stamp_ids[nm] if nm != 'end' else 63
                a('v_readlane_b32 s94, v31, %d' % src)
                if i == 0:
                    a('s_not_b32 s94, s94')
                a('s_nop 3')
                a('v_writelane_b32 v29, s94, %d' % i)
            a('v_lshlrev_b32 v28, 2, v%d' % vL)
            a('s_mov_b64 exec, 0xffff')
            a('global_atomic_umax v28, v29, %s' % sr(pDBG, 2))
            a('s_mov_b64 exec, -1')
            a.label('L_NODBG')
    a('s_endpgm')

    def slow_cnt(name, back, key, vdst, vaddr):
        a.label(name)
        a.restore(key)
        a('s_mov_b32 s%d, %d' % (sSPIN, cfg['spin']))
        a.label(name + '_LOOP')
        if cfg['sleep']:
            a('s_sleep %d' % cfg['sleep'])
        a('global_load_dword v%d, v%d, %s sc1' % (vdst, vaddr, sr(pDBG, 2)))
        a('s_sub_u32 s%d, s%d, 1' % (sSPIN, sSPIN))
        a('s_cmp_eq_u32 s%d, 0' % sSPIN)
        a('s_waitcnt vmcnt(0)')
        a('s_cbranch_scc1 %s' % back)
        a('v_cmp_ne_u32 vcc, 8, v%d' % vdst)
        a('s_cbranch_vccnz %s_LOOP' % name)
        a('s_branch %s' % back)
    slow_cnt('L_CHK_SLOW', 'L_CHK_OK', 'chk', vCHK, vSPARE)
    slow_cnt('L_QCHK_SLOW', 'L_QCHK_OK', 'qchk', vT1, vT2)
    a.label('L_QPOLL_SLOW')
    a.restore('qpoll')
    a('s_mov_b32 s%d, %d' % (sSPIN, cfg['spin']))
    a.label('L_QPOLL_LOOP')
    if cfg['sleep']:
        a('s_sleep %d' % cfg['sleep'])
    for k in range(4):
        a('global_load_dwordx4 %s, v%d, %s offset:%d sc1' % (vr(vT + 4 * k, 4), vQP, sr(pWS, 2), 1024 * k))
    a('s_sub_u32 s%d, s%d, 1' % (sSPIN, sSPIN))
    a('s_cmp_eq_u32 s%d, 0' % sSPIN)
    a('s_waitcnt vmcnt(0)')
    a('s_cbranch_scc1 L_QPOLL_OK')
    a('v_max3_u32 v44, v48, v49, v50')
    a('v_max3_u32 v45, v51, v52, v53')
    a('v_max3_u32 v46, v54, v55, v56')
    a('v_max3_u32 v47, v57, v58, v59')
    a('v_max3_u32 v44, v44, v60, v61')
    a('v_max3_u32 v45, v45, v62, v63')
    a('v_max3_u32 v44, v44, v46, v47')
    a('v_max_u32 v44, v44, v45')
    a('v_cmp_eq_u32 vcc, -1, v44')
    a('s_cbranch_vccnz L_QPOLL_LOOP')
    a('s_branch L_QPOLL_OK')
    a.label('L_END')
    body = a.finalize()
    return body


HEADER = open('cdna_kernels/%s.s.ref' % NAME).read().split('; Override launch geometry')[0]


def wrap(body, cfg):
    s = HEADER
    s += '; Override launch geometry by editing the next line (default: block=256,\n'
    s += '; grid=ceil(out_elems/256), lds=0). Harness parses it; keep it on one line.\n'
    s += '; @launch grid=(256,1,1) block=(512,1,1) lds=%d\n' % LDS_BYTES
    s += '.amdgcn_target "amdgcn-amd-amdhsa--gfx950"\n.text\n.globl %s_kernel\n.p2align 8\n' % NAME
    s += '.type %s_kernel,@function\n%s_kernel:\n' % (NAME, NAME)
    s += body
    s += 's_endpgm\n'
    s += '.section .rodata,"a"\n.p2align 6\n.amdhsa_kernel %s_kernel\n' % NAME
    s += '  .amdhsa_next_free_vgpr 256\n  .amdhsa_next_free_sgpr 102\n  .amdhsa_accum_offset 256\n'
    s += '  .amdhsa_group_segment_fixed_size 0\n  .amdhsa_kernarg_size 112\n  .amdhsa_user_sgpr_count 2\n'
    s += '  .amdhsa_user_sgpr_kernarg_segment_ptr 1\n  .amdhsa_system_sgpr_workgroup_id_x 1\n.end_amdhsa_kernel\n'
    return s


def build(out, **kw):
    cfg = dict(DEFAULT)
    for k in kw:
        assert k in cfg, k
    cfg.update(kw)
    s = wrap(gen(cfg), cfg)
    open(out, 'w').write(s)
    return s


if __name__ == '__main__':
    out = sys.argv[1] if len(sys.argv) > 1 else 'cdna_kernels/%s.s' % NAME
    kw = {}
    for arg in sys.argv[2:]:
        k, v = arg.split('=')
        kw[k] = eval(v)
    build(out, **kw)
    print('wrote', out)
```

```python
import sys
from asmlib import Asm

NAME = 'gated_mix__mha_block_cached__dense_activation_gelu__decode'

DEFAULT = dict(
    nt_kv=True,
    nt_w='q12ox',
    gran=4,
    pre=36,
    adr=8,
    q0=6,
    q1=20,
    q2=25,
    q3=30,
    h0=11,
    nvk=12,
    win=12,
    thr=5,
    thr0=5,
    thr_v=0,
    vstep=False,
    prio=3,
    p_wo=8,
    p_g=0, p_gc=3,
    chk_u=4,
    p_hs=2, p_hc=5, p_hg=9,
    sleep=0,
    sleep1=0, sleep2=0,
    spin=20000,
    stop=None,
    stamps=False,
)

sXCD, sH, sB, sC, sW, sN = 3, 4, 5, 6, 7, 8
sR, sR1, sLI, sJ, sBR, sG = 9, 10, 11, 12, 13, 14
sT0 = 15
pX, pK, pV, pWQ, pWO, pW1, pB1 = 16, 18, 20, 22, 24, 28, 30
pW2, pB2, pG, pOUT, pDBG, pWS = 32, 34, 36, 38, 40, 42
rK, rV, rWQ, rX, rWO, rG, rB1, rB2 = 44, 48, 52, 56, 68, 72, 76, 80
sSELLO, sSELHI = 84, 85
sOFF = 86
sWQO = 93
sT1, sT2 = 94, 95
sKVO = 26
sM1 = 96
sM0 = 98
sSPIN = 100

vL = 0
vO16 = 1
vQA = 2
vAO = 3
vAML = 4
vAY = 5
vPO = 6
vPML = 7
vPY = 8
vQP = 9
vLOW = 10
vWQ = 11
vLOR = 12
vT0, vT1, vT2 = 13, 14, 15
vX0, vX1 = 16, 24
vACC = 32
vQ = 40
vR = 44
vT = 48
vU = 56
RING = 64
vPP = 176
VE = 192
vSP, vWO = 128, 144
vXG, vGW, vB2, vCHK, vSPARE, vG, vOMG = 128, 132, 136, 138, 139, 140, 141
vPA = 142
vB2F = 24
vHC, vHA, vHG, vB1 = 128, 129, 132, 136

OBUF, OSTR = 0, 1040
MX, LW, OCB, QB = 8320, 8352, 8384, 8512
LDS_BYTES = 9216

OREG = 0
YREG = 0x80000
YB = 32 * 8192
FREG = 0x100000
QREG = 0x180000
HREG = 0x1A0000
STREG = 0x200000
CNT = 128
HCNT = 0

LOG2E = 1.4426950408889634


def f2h(x):
    import struct
    return '0x%08x' % struct.unpack('<I', struct.pack('<f', x))[0]


def slot(t):
    return RING + 4 * t


def vslot(t):
    return VE + 4 * t if t < 16 else RING + 4 * (t - 16)


def vr(a, n):
    return 'v[%d:%d]' % (a, a + n - 1)


def sr(a, n):
    return 's[%d:%d]' % (a, a + n - 1)


def gen(cfg):
    a = Asm()
    NT = ' nt' if cfg['nt_kv'] else ''
    NWQ, NW1, NW2, NWO, NW = [' nt' if ch in cfg['nt_w'] else '' for ch in 'q12ox']
    gran = cfg['gran']
    CS = f2h(LOG2E / 16.0)

    def kvoff(t):
        return (t // gran) * gran * 8192 + (t % gran) * 1024
    stamp_ids = {}

    def stamp(name):
        if not cfg['stamps']:
            return
        i = stamp_ids.setdefault(name, len(stamp_ids))
        a.c('stamp %d %s' % (i, name))
        a('s_memrealtime s[100:101]')
        a('s_waitcnt lgkmcnt(0)')
        a('v_writelane_b32 v31, s100, %d' % i)

    def srd(r, base, off_sgpr, nrec):
        if off_sgpr is None:
            a('s_mov_b32 s%d, s%d' % (r, base))
            a('s_mov_b32 s%d, s%d' % (r + 1, base + 1))
        else:
            a('s_add_u32 s%d, s%d, s%d' % (r, base, off_sgpr))
            a('s_addc_u32 s%d, s%d, 0' % (r + 1, base + 1))
        a('s_mov_b32 s%d, %s' % (r + 2, nrec))
        a('s_mov_b32 s%d, 0x00020000' % (r + 3))

    def kv_load(rs, t):
        reg = slot(t) if rs == rK else vslot(t)
        if gran >= 4:
            so = '0' if t < 4 else 's%d' % (sOFF + t // 4 - 1)
            off = (t % 4) * 1024
        else:
            off = 0
            so = '0'
            if t > 0:
                a('s_mov_b32 s%d, %d' % (sKVO, kvoff(t)))
                so = 's%d' % sKVO
        a('buffer_load_dwordx4 %s, v%d, %s, %s offen offset:%d%s' % (vr(reg, 4), vO16, sr(rs, 4), so, off, NT))

    seq = [0]

    def seq_upto(n, thr=0):
        n = min(n, 64)
        while seq[0] < n:
            t = seq[0]
            if thr and t >= thr:
                a('s_waitcnt vmcnt(%d)' % (thr - 1))
            if t < 32:
                kv_load(rK, t)
            else:
                kv_load(rV, t - 32)
            seq[0] += 1

    def v_upto(n, thr=0):
        seq_upto(32 + min(n, 32), thr)

    def allred(op, reg, tmp):
        for n in (8, 4, 2, 1):
            a('%s_dpp v%d, v%d, v%d row_ror:%d row_mask:0xf bank_mask:0xf' % (op, reg, reg, reg, n))
        a('v_mov_b32 v%d, v%d' % (tmp, reg))
        a('v_permlane16_swap_b32 v%d, v%d' % (reg, tmp))
        a('%s v%d, v%d, v%d' % (op, reg, reg, tmp))
        a('v_mov_b32 v%d, v%d' % (tmp, reg))
        a('v_permlane32_swap_b32 v%d, v%d' % (reg, tmp))
        a('%s v%d, v%d, v%d' % (op, reg, reg, tmp))

    def rnd_bf16(dst, src):
        a('v_cvt_pk_bf16_f32 v%d, v%d, v%d' % (dst, src, src))
        a('v_and_b32 v%d, 0xffff0000, v%d' % (dst, dst))

    a('s_cmp_ge_u32 s2, 256')
    a('s_cbranch_scc1 L_END')
    a('s_load_dwordx16 s[16:31], s[0:1], 0')
    a('s_load_dwordx8 s[32:39], s[0:1], 64')
    a('s_load_dwordx4 s[40:43], s[0:1], 96')
    if cfg['stamps']:
        a('v_mov_b32 v31, 0')
    a('v_lshrrev_b32 v%d, 6, v0' % vT0)
    a('v_and_b32 v%d, 63, v0' % vL)
    a('v_readfirstlane_b32 s%d, v%d' % (sW, vT0))
    a('s_and_b32 s%d, s2, 7' % sXCD)
    a('s_lshr_b32 s%d, s2, 3' % sR)
    a('s_and_b32 s%d, s%d, 1' % (sR1, sR))
    a('s_lshl_b32 s%d, s%d, 3' % (sLI, sR1))
    a('s_add_u32 s%d, s%d, s%d' % (sH, sLI, sXCD))
    a('s_lshr_b32 s%d, s%d, 1' % (sB, sR))
    a('s_and_b32 s%d, s%d, 1' % (sB, sB))
    a('s_lshr_b32 s%d, s%d, 2' % (sC, sR))
    a('s_lshl_b32 s%d, s%d, 4' % (sG, sB))
    a('s_add_u32 s%d, s%d, s%d' % (sG, sG, sH))
    a('s_lshl_b32 s%d, s%d, 4' % (sN, sC))
    a('s_add_u32 s%d, s%d, s%d' % (sN, sN, sH))
    a('v_lshlrev_b32 v%d, 4, v%d' % (vO16, vL))
    a('s_mov_b32 s%d, 0x05040100' % sSELLO)
    a('s_mov_b32 s%d, 0x07060302' % sSELHI)
    stamp('entry')
    a('s_cmp_eq_u32 s%d, 0' % sW)
    a('s_cbranch_scc1 L_QWAVE')
    a('s_cmp_eq_u32 s%d, 1' % sW)
    a('s_cselect_b32 s%d, s%d, 0' % (sT1, sB))
    a('s_cmp_lt_u32 s%d, 112' % sN)
    a('s_cselect_b32 s%d, s%d, 0' % (sT1, sT1))
    a('s_cmp_eq_u32 s%d, 1' % sT1)
    a('s_cbranch_scc1 L_HWAVE')

    def kv_prep():
        a('s_lshl_b32 s%d, s%d, 21' % (sT1, sG))
        a('s_lshl_b32 s%d, s%d, 18' % (sT2, sC))
        a('s_add_u32 s%d, s%d, s%d' % (sT1, sT1, sT2))
        a('s_mul_i32 s%d, s%d, %d' % (sT2, sW, gran * 1024))
        a('s_add_u32 s%d, s%d, s%d' % (sT1, sT1, sT2))
        if gran >= 4:
            for j in range(1, 8):
                a('s_mov_b32 s%d, %d' % (sOFF + j - 1, kvoff(4 * j)))

    def kv_srds():
        srd(rK, pK, sT1, str(kvoff(31) + 1024))
        srd(rV, pV, sT1, str(kvoff(31) + 1024))

    def addr_block():
        a.c('hand-off addresses')
        a('s_lshl_b32 s%d, s%d, 3' % (sT1, sH))
        a('s_add_u32 s%d, s%d, s%d' % (sT2, sT1, sW))
        a('s_lshl_b32 s%d, s%d, 12' % (sT2, sT2))
        a('s_lshl_b32 s%d, s%d, 3' % (sR, sB))
        a('s_add_u32 s%d, s%d, s%d' % (sR, sR, sC))
        a('s_lshl_b32 s%d, s%d, 7' % (sWQO, sR))
        a('s_add_u32 s%d, s%d, s%d' % (sWQO, sWQO, sT2))
        a('v_lshrrev_b32 v%d, 3, v%d' % (vT0, vL))
        a('v_and_b32 v%d, 7, v%d' % (vT1, vL))
        a('v_lshl_add_u32 v%d, v%d, 4, s%d' % (vAO, vT0, sWQO))
        a('s_lshl_b32 s%d, s%d, 3' % (sWQO, sR))
        a('s_add_u32 s%d, s%d, s%d' % (sWQO, sWQO, sT2))
        a('s_add_u32 s%d, s%d, 2048' % (sWQO, sWQO))
        a('v_mov_b32 v%d, s%d' % (vAML, sWQO))
        a('s_add_u32 s%d, s%d, s%d' % (sT2, sT1, sC))
        a('s_lshl_b32 s%d, s%d, 12' % (sT2, sT2))
        a('v_lshlrev_b32 v%d, 7, v%d' % (vPO, vT1))
        a('v_lshl_add_u32 v%d, v%d, 4, v%d' % (vPO, vT0, vPO))
        a('v_add_u32 v%d, s%d, v%d' % (vPO, sT2, vPO))
        a('s_add_u32 s%d, s%d, 2048' % (sT2, sT2))
        a('v_lshl_add_u32 v%d, v%d, 3, s%d' % (vPML, vT1, sT2))
        a('v_mul_u32_u24 v%d, %d, v%d' % (vLOR, OSTR, vT1))
        a('v_lshl_add_u32 v%d, v%d, 4, v%d' % (vLOR, vT0, vLOR))
        a('s_lshl_b32 s%d, s%d, 7' % (sT1, sW))
        a('s_add_u32 s%d, s%d, %d' % (sT1, sT1, OBUF))
        a('v_add_u32 v%d, s%d, v%d' % (vLOR, sT1, vLOR))
        a('v_lshrrev_b32 v%d, 5, v%d' % (vT0, vL))
        a('v_and_b32 v%d, 31, v%d' % (vT2, vL))
        a('v_lshlrev_b32 v%d, 4, v%d' % (vT0, vT0))
        a('v_lshl_add_u32 v%d, v%d, 5, v%d' % (vT0, vT2, vT0))
        a('s_mul_i32 s%d, s%d, %d' % (sT1, sW, OSTR))
        a('s_add_u32 s%d, s%d, %d' % (sT1, sT1, OBUF))
        a('v_add_u32 v%d, s%d, v%d' % (vLOW, sT1, vT0))
        a('s_mul_i32 s%d, s%d, %d' % (sT1, sB, FREG - YREG))
        a('s_add_u32 s%d, s%d, %d' % (sT1, sT1, YREG))
        a('s_lshl_b32 s%d, s%d, 15' % (sT2, sW))
        a('s_add_u32 s%d, s%d, s%d' % (sT2, sT2, sT1))
        a('s_lshl_b32 s%d, s%d, 6' % (sWQO, sN))
        a('s_add_u32 s%d, s%d, s%d' % (sT2, sT2, sWQO))
        a('v_lshrrev_b32 v%d, 1, v%d' % (vT2, vT1))
        a('v_lshlrev_b32 v%d, 13, v%d' % (vAY, vT2))
        a('v_and_b32 v%d, 1, v%d' % (vT2, vL))
        a('v_lshl_add_u32 v%d, v%d, 5, v%d' % (vAY, vT2, vAY))
        a('v_lshrrev_b32 v%d, 5, v%d' % (vT2, vL))
        a('v_lshl_add_u32 v%d, v%d, 18, v%d' % (vAY, vT2, vAY))
        a('v_bfe_u32 v%d, v%d, 4, 1' % (vT2, vL))
        a('v_lshl_add_u32 v%d, v%d, 4, v%d' % (vAY, vT2, vAY))
        a('v_add_u32 v%d, s%d, v%d' % (vAY, sT2, vAY))
        a('s_cmp_ge_u32 s%d, 28' % sN)
        a('s_cselect_b32 s%d, 1, 0' % sBR)
        a('s_mul_i32 s%d, s%d, 28' % (sT1, sBR))
        a('s_sub_u32 s%d, s%d, s%d' % (sJ, sN, sT1))
        a('s_min_u32 s%d, s%d, 27' % (sJ, sJ))
        a('s_lshl_b32 s%d, s%d, 18' % (sT1, sBR))
        a('s_add_u32 s%d, s%d, %d' % (sT1, sT1, YREG))
        a('s_lshl_b32 s%d, s%d, 13' % (sT2, sJ))
        a('s_add_u32 s%d, s%d, s%d' % (sT2, sT2, sT1))
        a('v_and_b32 v%d, 15, v%d' % (vT2, vL))
        a('v_lshlrev_b32 v%d, 6, v%d' % (vPY, vT2))
        a('v_lshrrev_b32 v%d, 4, v%d' % (vT2, vL))
        a('v_lshl_add_u32 v%d, v%d, 4, v%d' % (vPY, vT2, vPY))
        a('v_add_u32 v%d, s%d, v%d' % (vPY, sT2, vPY))
        a('s_mov_b32 s%d, 0xcccccccc' % sM1)
        a('s_mov_b32 s%d, 0xcccccccc' % (sM1 + 1))
        a('s_mov_b32 s%d, 0xaaaaaaaa' % sM0)
        a('s_mov_b32 s%d, 0xaaaaaaaa' % (sM0 + 1))

    pre = cfg['pre']
    assert 32 <= pre <= 46
    assert YB == 1 << 18

    a.save('head')
    kv_prep()
    a('s_waitcnt lgkmcnt(0)')
    stamp('kernarg')
    kv_srds()
    seq_upto(min(cfg['adr'], pre), cfg['thr'])
    addr_block()
    seq_upto(pre, cfg['thr'])
    stamp('pre issued')
    a.save('b1')
    a('s_branch L_B1')

    def wq_regs(m):
        return VE + 8 * m, VE + 8 * m + 4

    def tile_loads(stride, nt):
        for row in range(14):
            r = wq_regs(row // 2)[row % 2]
            if row == 0:
                a('buffer_load_dwordx4 %s, v%d, %s, 0 offen%s' % (vr(r, 4), vWQ, sr(rWQ, 4), nt))
            else:
                a('s_mov_b32 s%d, %d' % (sWQO, row * stride))
                a('buffer_load_dwordx4 %s, v%d, %s, s%d offen%s' % (vr(r, 4), vWQ, sr(rWQ, 4), sWQO, nt))
        srd(rX, pX, None, '1792')
        a('buffer_load_dwordx4 %s, v%d, %s, s%d offen%s' % (vr(vX0, 4), vT2, sr(rX, 4), sT1, NW))
        a('buffer_load_dwordx3 %s, v%d, %s, s%d offen offset:16%s' % (vr(vX0 + 4, 3), vT2, sr(rX, 4), sT1, NW))
        a('buffer_load_dwordx4 %s, v%d, %s, s%d offen offset:896%s' % (vr(vX1, 4), vT2, sr(rX, 4), sT1, NW))
        a('buffer_load_dwordx3 %s, v%d, %s, s%d offen offset:912%s' % (vr(vX1 + 4, 3), vT2, sr(rX, 4), sT1, NW))

    A0, A1 = vACC, vACC + 8

    def two_batch_reduce():
        for j in range(8):
            a('v_permlane32_swap_b32 v%d, v%d' % (A0 + j, A1 + j))
        for j in range(8):
            a('v_add_f32 v%d, v%d, v%d' % (A0 + j, A0 + j, A1 + j))
        for j in range(4):
            a('v_permlane16_swap_b32 v%d, v%d' % (A0 + j, A0 + j + 4))
        for j in range(4):
            a('v_add_f32 v%d, v%d, v%d' % (A0 + j, A0 + j, A0 + j + 4))
        for j in range(4):
            a('v_add_f32_dpp v%d, v%d, v%d row_ror:8 row_mask:0xf bank_mask:0xf' % (A0 + j, A0 + j, A0 + j))

    def tile_compute(name):
        for m in range(7):
            A, B = wq_regs(m)
            for k in range(4):
                a('v_perm_b32 v%d, v%d, v%d, s%d' % (vT + 2 * k, B + k, A + k, sSELLO))
                a('v_perm_b32 v%d, v%d, v%d, s%d' % (vT + 2 * k + 1, B + k, A + k, sSELHI))
            if m == 0:
                stamp(name)
            for j in range(8):
                a('v_dot2_f32_bf16 v%d, v%d, v%d, %s' % (A0 + j, vT + j, vX0 + m, '0' if m == 0 else 'v%d' % (A0 + j)))
            for j in range(8):
                a('v_dot2_f32_bf16 v%d, v%d, v%d, %s' % (A1 + j, vT + j, vX1 + m, '0' if m == 0 else 'v%d' % (A1 + j)))
        two_batch_reduce()

    a.label('L_HWAVE')
    a.restore('head')
    seq[0] = 0
    a.c('wave 1 (F): w1 tile')
    if cfg['prio']:
        a('s_setprio %d' % cfg['prio'])
    a('s_mul_i32 s%d, s%d, 147' % (sLI, sN))
    a('s_lshr_b32 s%d, s%d, 12' % (sLI, sLI))
    a('s_mul_i32 s%d, s%d, 28' % (sT2, sLI))
    a('s_sub_u32 s%d, s%d, s%d' % (sR1, sN, sT2))
    a('v_lshrrev_b32 v%d, 3, v%d' % (vT0, vL))
    a('v_and_b32 v%d, 7, v%d' % (vT1, vL))
    a('s_mul_i32 s%d, s%d, %d' % (sT2, sLI, 112 * 3584))
    a('s_lshl_b32 s%d, s%d, 7' % (sWQO, sR1))
    a('s_add_u32 s%d, s%d, s%d' % (sT2, sT2, sWQO))
    a('v_mul_u32_u24 v%d, %d, v%d' % (vWQ, 14 * 3584, vT0))
    a('v_lshl_add_u32 v%d, v%d, 4, v%d' % (vWQ, vT1, vWQ))
    a('v_mul_u32_u24 v%d, 28, v%d' % (vT2, vT0))
    a('s_mul_i32 s%d, s%d, 224' % (sT1, sLI))
    a('s_waitcnt lgkmcnt(0)')
    stamp('kernarg')
    srd(rWQ, pW1, sT2, str(111 * 3584 + 128))
    tile_loads(3584, NW1)
    a('s_lshl_b32 s%d, s%d, 11' % (sT2, sR1))
    a('s_lshl_b32 s%d, s%d, 9' % (sWQO, sLI))
    a('s_add_u32 s%d, s%d, s%d' % (sT2, sT2, sWQO))
    a('s_add_u32 s%d, s%d, %d' % (sT2, sT2, HREG))
    a('v_lshlrev_b32 v%d, 5, v%d' % (vQA, vT1))
    a('v_bfe_u32 v%d, v%d, 4, 1' % (vT2, vL))
    a('v_lshl_add_u32 v%d, v%d, 4, v%d' % (vQA, vT2, vQA))
    a('v_lshrrev_b32 v%d, 5, v%d' % (vT2, vL))
    a('v_lshl_add_u32 v%d, v%d, 8, v%d' % (vQA, vT2, vQA))
    a('v_add_u32 v%d, s%d, v%d' % (vQA, sT2, vQA))
    a('s_lshl_b32 s%d, s%d, 2' % (sT2, sR1))
    a('s_add_u32 s%d, s%d, %d' % (sT2, sT2, HCNT))
    a('v_mov_b32 v%d, s%d' % (vQP, sT2))
    kv_prep()
    kv_srds()
    seq_upto(cfg['q0'])
    addr_block()
    tile_compute('first w1 pair')
    a('s_mov_b32 exec_lo, 0x00ff00ff')
    a('s_mov_b32 exec_hi, 0x00ff00ff')
    a('global_store_dwordx4 v%d, %s, %s sc1' % (vQA, vr(A0, 4), sr(pWS, 2)), tag='hst')
    a('s_mov_b64 exec, -1')
    stamp('h tile stored')
    seq_upto(cfg['h0'], cfg['thr0'])
    a('v_mov_b32 v%d, 1' % vT1)
    a.wait_tag('hst')
    a('s_mov_b64 exec, 1')
    a('global_atomic_add v%d, v%d, %s' % (vQP, vT1, sr(pDBG, 2)))
    a('s_mov_b64 exec, -1')
    stamp('h tile counted')
    if cfg['prio']:
        a('s_setprio 0')
    assert pre - cfg['h0'] >= max(cfg['thr'], cfg['thr0'])
    seq_upto(pre, cfg['thr0'])
    a('s_branch L_B1')

    a.label('L_QWAVE')
    a.restore('head')
    seq[0] = 0
    a.c('wave 0: wq tile, x pairs, slot clears')
    if cfg['prio']:
        a('s_setprio %d' % cfg['prio'])
    a('s_lshl_b32 s%d, s%d, 3' % (sR, sB))
    a('s_add_u32 s%d, s%d, s%d' % (sR, sR, sC))
    a('s_lshr_b32 s%d, s%d, 2' % (sLI, sR))
    a('s_and_b32 s%d, s%d, 3' % (sR1, sR))
    a('v_lshrrev_b32 v%d, 3, v%d' % (vT0, vL))
    a('v_and_b32 v%d, 7, v%d' % (vT1, vL))
    a('s_mul_i32 s%d, s%d, %d' % (sT2, sLI, 112 * 8192))
    a('s_lshl_b32 s%d, s%d, 9' % (sWQO, sH))
    a('s_add_u32 s%d, s%d, s%d' % (sT2, sT2, sWQO))
    a('s_lshl_b32 s%d, s%d, 7' % (sWQO, sR1))
    a('s_add_u32 s%d, s%d, s%d' % (sT2, sT2, sWQO))
    a('v_mul_u32_u24 v%d, %d, v%d' % (vWQ, 14 * 8192, vT0))
    a('v_lshl_add_u32 v%d, v%d, 4, v%d' % (vWQ, vT1, vWQ))
    a('v_mul_u32_u24 v%d, 28, v%d' % (vT2, vT0))
    a('s_mul_i32 s%d, s%d, 224' % (sT1, sLI))
    a('s_waitcnt lgkmcnt(0)')
    stamp('kernarg')
    srd(rWQ, pWQ, sT2, str(111 * 8192 + 128))
    tile_loads(8192, NWQ)
    stamp('wq issued')
    for k in range(4):
        a('v_mov_b32 v%d, -1' % (vR + k))
    a('s_lshl_b32 s%d, s%d, 3' % (sT2, sH))
    a('s_add_u32 s%d, s%d, s%d' % (sT2, sT2, sLI))
    a('s_lshl_b32 s%d, s%d, 10' % (sT2, sT2))
    a('s_lshl_b32 s%d, s%d, 8' % (sWQO, sR1))
    a('s_add_u32 s%d, s%d, s%d' % (sT2, sT2, sWQO))
    a('s_add_u32 s%d, s%d, %d' % (sT2, sT2, QREG))
    a('v_lshlrev_b32 v%d, 5, v%d' % (vQA, vT1))
    a('v_bfe_u32 v%d, v%d, 4, 1' % (vT2, vL))
    a('v_lshl_add_u32 v%d, v%d, 4, v%d' % (vQA, vT2, vQA))
    a('v_lshrrev_b32 v%d, 5, v%d' % (vT2, vL))
    a('v_lshl_add_u32 v%d, v%d, 12, v%d' % (vQA, vT2, vQA))
    a('v_add_u32 v%d, s%d, v%d' % (vQA, sT2, vQA))
    a('s_mov_b32 exec_lo, 0x00ff00ff')
    a('s_mov_b32 exec_hi, 0x00ff00ff')
    a('global_store_dwordx4 v%d, %s, %s sc1' % (vQA, vr(vR, 4), sr(pWS, 2)), tag='clr')
    a('s_mov_b64 exec, -1')
    a('s_lshl_b32 s%d, s%d, 15' % (sWQO, sH))
    a('s_lshl_b32 s%d, s%d, 7' % (sT2, sR))
    a('s_add_u32 s%d, s%d, s%d' % (sT2, sT2, sWQO))
    a('v_lshlrev_b32 v48, 12, v%d' % vT0)
    a('v_lshl_add_u32 v48, v%d, 4, v48' % vT1)
    a('v_add_u32 v48, s%d, v48' % sT2)
    a('global_store_dwordx4 v48, %s, %s sc1' % (vr(vR, 4), sr(pWS, 2)), tag='clr')
    a('s_lshl_b32 s%d, s%d, 3' % (sT2, sR))
    a('s_add_u32 s%d, s%d, s%d' % (sT2, sT2, sWQO))
    a('s_add_u32 s%d, s%d, 2048' % (sT2, sT2))
    a('v_lshl_add_u32 v50, v%d, 12, s%d' % (vL, sT2))
    a('s_mov_b64 exec, 0xff')
    a('global_store_dwordx2 v50, %s, %s sc1' % (vr(vR, 2), sr(pWS, 2)), tag='clr')
    a('s_mov_b64 exec, -1')
    a('s_mul_i32 s%d, s%d, %d' % (sWQO, sB, FREG - YREG))
    a('s_lshl_b32 s%d, s%d, 6' % (sT2, sN))
    a('s_add_u32 s%d, s%d, s%d' % (sWQO, sWQO, sT2))
    a('s_add_u32 s%d, s%d, %d' % (sWQO, sWQO, YREG))
    a('v_lshrrev_b32 v51, 2, v%d' % vL)
    a('v_and_b32 v52, 3, v%d' % vL)
    a('v_lshlrev_b32 v51, 13, v51')
    a('v_lshl_add_u32 v51, v52, 4, v51')
    a('v_add_u32 v51, s%d, v51' % sWQO)
    a('v_add_u32 v52, 0x20000, v51')
    a('v_add_u32 v53, %d, v51' % YB)
    a('v_add_u32 v54, %d, v52' % YB)
    a('global_store_dwordx4 v51, %s, %s sc1' % (vr(vR, 4), sr(pWS, 2)), tag='clr')
    a('global_store_dwordx4 v53, %s, %s sc1' % (vr(vR, 4), sr(pWS, 2)), tag='clr')
    a('s_mov_b32 exec_hi, 0xffff')
    a('global_store_dwordx4 v52, %s, %s sc1' % (vr(vR, 4), sr(pWS, 2)), tag='clr')
    a('global_store_dwordx4 v54, %s, %s sc1' % (vr(vR, 4), sr(pWS, 2)), tag='clr')
    a('s_mov_b64 exec, -1')
    stamp('clears issued')
    kv_prep()
    kv_srds()
    seq_upto(cfg['q0'])
    a('s_lshl_b32 s%d, s%d, 1' % (sT2, sH))
    a('s_add_u32 s%d, s%d, s%d' % (sT2, sT2, sB))
    a('s_lshl_b32 s%d, s%d, 12' % (sT2, sT2))
    a('s_add_u32 s%d, s%d, %d' % (sT2, sT2, QREG))
    a('v_add_u32 v%d, s%d, v%d' % (vQP, sT2, vO16))
    addr_block()
    tile_compute('first wq pair')
    a('s_lshl_b32 s%d, s%d, 2' % (sT1, sG))
    a('s_add_u32 s%d, s%d, %d' % (sT1, sT1, CNT))
    a('v_mov_b32 v%d, s%d' % (vT0, sT1))
    a('v_mov_b32 v%d, 1' % vT1)
    a.wait_tag('clr')
    a('s_mov_b32 exec_lo, 0x00ff00ff')
    a('s_mov_b32 exec_hi, 0x00ff00ff')
    a('global_store_dwordx4 v%d, %s, %s sc1' % (vQA, vr(A0, 4), sr(pWS, 2)))
    a('s_mov_b64 exec, 1')
    a('global_atomic_add v%d, v%d, %s' % (vT0, vT1, sr(pDBG, 2)))
    a('s_mov_b64 exec, -1')
    stamp('q tile published')
    seq_upto(cfg['q1'], cfg['thr0'])
    a('v_and_b32 v%d, 1, v%d' % (vT0, vL))
    a('s_lshl_b32 s%d, s%d, 2' % (sT1, sH))
    a('s_add_u32 s%d, s%d, %d' % (sT1, sT1, CNT))
    a('v_lshl_add_u32 v%d, v%d, 6, s%d' % (vT2, vT0, sT1))
    a('global_load_dword v%d, v%d, %s sc1' % (vT1, vT2, sr(pDBG, 2)))
    seq_upto(cfg['q2'], cfg['thr0'])
    if cfg['stamps']:
        a('v_mov_b32 v%d, v%d' % (vT1, vT1))
        stamp('q cnt sampled')
    a('v_cmp_ne_u32 vcc, 8, v%d' % vT1)
    a.save('qchk')
    a('s_cbranch_vccnz L_QCHK_SLOW')
    a.label('L_QCHK_OK')
    stamp('q counters ok')
    for k in range(4):
        a('global_load_dwordx4 %s, v%d, %s offset:%d sc1' % (vr(vT + 4 * k, 4), vQP, sr(pWS, 2), 1024 * k))
    seq_upto(cfg['q3'] or pre, cfg['thr0'])
    a('v_max3_u32 v44, v48, v49, v50')
    a('v_max3_u32 v45, v51, v52, v53')
    a('v_max3_u32 v46, v54, v55, v56')
    a('v_max3_u32 v47, v57, v58, v59')
    a('v_max3_u32 v44, v44, v60, v61')
    a('v_max3_u32 v45, v45, v62, v63')
    a('v_max3_u32 v44, v44, v46, v47')
    a('v_max_u32 v44, v44, v45')
    a('v_cmp_eq_u32 vcc, -1, v44')
    stamp('q data sampled')
    a.save('qpoll')
    a('s_cbranch_vccnz L_QPOLL_SLOW')
    a.label('L_QPOLL_OK')
    for j in range(4):
        a('v_add_f32 v%d, v%d, v%d' % (48 + j, 48 + j, 52 + j))
        a('v_add_f32 v%d, v%d, v%d' % (56 + j, 56 + j, 60 + j))
    for j in range(4):
        a('v_add_f32 v%d, v%d, v%d' % (48 + j, 48 + j, 56 + j))
    a('v_cvt_pk_bf16_f32 v48, v48, v49')
    a('v_cvt_pk_bf16_f32 v49, v50, v51')
    a('v_lshlrev_b32 v%d, 3, v%d' % (vT0, vL))
    a('ds_write_b64 v%d, v[48:49] offset:%d' % (vT0, QB))
    stamp('q gathered')
    if cfg['prio']:
        a('s_setprio 0')
    seq_upto(pre, cfg['thr0'])
    a('s_waitcnt lgkmcnt(0)')
    assert seq[0] == pre

    a.label('L_B1')
    if not (cfg['thr'] and pre - cfg['q2'] >= max(cfg['thr'], cfg['thr0'])):
        assert not cfg['thr']
        a.restore('b1')
    a('s_barrier')
    stamp('B1')
    a('v_and_b32 v%d, 31, v%d' % (vT0, vL))
    a('v_lshlrev_b32 v%d, 4, v%d' % (vT0, vT0))
    a('ds_read_b128 %s, v%d offset:%d' % (vr(vQ, 4), vT0, QB))
    seq_upto(32)

    a.c('K phase')
    pool = [24, 25, 26, 27, 28, 29, 30, 56, 57, 58, 59, 60, 61, 62, 63, 48, 49, 50, 51, 52, 53, 54, 55]
    if not cfg['stamps']:
        pool.append(31)
    levels = {1: [], 2: [], 3: [], 4: [], 5: []}

    def merge(level, x, y):
        if level == 1:
            d = pool.pop(0)
            a('v_add_f32_dpp v%d, v%d, v%d row_ror:8 row_mask:0xf bank_mask:0x3' % (d, x, x))
            a('v_add_f32_dpp v%d, v%d, v%d row_ror:8 row_mask:0xf bank_mask:0xc' % (d, y, y))
            pool.extend([x, y])
            return d
        if level == 2:
            d = pool.pop(0)
            a('v_add_f32_dpp v%d, v%d, v%d row_shl:4 row_mask:0xf bank_mask:0x5' % (d, x, x))
            a('v_add_f32_dpp v%d, v%d, v%d row_shr:4 row_mask:0xf bank_mask:0xa' % (d, y, y))
            pool.extend([x, y])
            return d
        qp = '[2,3,0,1]' if level == 3 else '[1,0,3,2]'
        msk = sM1 if level == 3 else sM0
        a('v_add_f32_dpp v%d, v%d, v%d quad_perm:%s row_mask:0xf bank_mask:0xf' % (x, x, x, qp))
        a('v_add_f32_dpp v%d, v%d, v%d quad_perm:%s row_mask:0xf bank_mask:0xf' % (y, y, y, qp))
        a('v_cndmask_b32_e64 v%d, v%d, v%d, %s' % (x, x, y, sr(msk, 2)))
        pool.append(y)
        return x

    def tree_step(gap, flush=False):
        for level in (4, 3, 2, 1):
            L = levels[level]
            while len(L) >= 2 and (flush or (L[0][1] < gap and L[1][1] < gap)):
                x = L.pop(0)[0]
                y = L.pop(0)[0]
                levels[level + 1].append((merge(level, x, y), gap))
                if not flush:
                    break

    v0 = max(0, seq[0] - 32)
    for j in range(16):
        t0, t1 = 2 * j, 2 * j + 1
        x = pool.pop(0)
        y = pool.pop(0)
        for k in range(4):
            a('v_dot2_f32_bf16 v%d, v%d, v%d, %s' % (x, slot(t0) + k, vQ + k, '0' if k == 0 else 'v%d' % x))
            a('v_dot2_f32_bf16 v%d, v%d, v%d, %s' % (y, slot(t1) + k, vQ + k, '0' if k == 0 else 'v%d' % y))
        if cfg['nvk'] > v0:
            v_upto(min(v0 + ((cfg['nvk'] - v0) * (j + 1) + 15) // 16, 16 + min(2 * j + 2, 16)))
        tree_step(j)
        a('v_permlane16_swap_b32 v%d, v%d' % (x, y))
        a('v_add_f32 v%d, v%d, v%d' % (x, x, y))
        pool.append(y)
        levels[1].append((x, j))
        if j in (0, 7):
            stamp('K pair %d' % j)
    for g in range(16, 24):
        tree_step(g)
    assert len(levels[5]) == 1 and not any(levels[l] for l in (1, 2, 3, 4)), levels
    vS = levels[5][0][0]
    stamp('K done')
    vM = 54
    vE, vTM = 28, 29

    rnd_bf16(30, vS)
    vS = 30
    a('v_mov_b32 v%d, v%d' % (vM, vS))
    allred('v_max_f32', vM, vTM)
    a('s_lshl_b32 s%d, s%d, 2' % (sT1, sW))
    a('s_add_u32 s%d, s%d, %d' % (sT1, sT1, MX))
    a('v_mov_b32 v%d, s%d' % (vT0, sT1))
    a('v_sub_f32 v%d, v%d, v%d' % (vE, vS, vM))
    a('v_mul_f32 v%d, %s, v%d' % (vE, CS, vE))
    a('v_exp_f32 v%d, v%d' % (vE, vE))
    a('ds_write_b32 v%d, v%d' % (vT0, vM))
    a('v_mov_b32 v%d, v%d' % (vS, vE))
    a('v_mov_b32 v%d, v%d' % (vTM, vE))
    a('v_permlane16_swap_b32 v%d, v%d' % (vS, vTM))
    a('v_cvt_pk_bf16_f32 v%d, v%d, v%d' % (vS, vS, vTM))

    def rev4(x):
        return ((x & 1) << 3) | ((x & 2) << 1) | ((x & 4) >> 1) | ((x & 8) >> 3)
    for u in range(16):
        a('ds_swizzle_b32 v%d, v%d offset:%d' % (vPP + u, vS, rev4(u) << 5))
    allred('v_add_f32', vE, vTM)
    a('ds_write_b32 v%d, v%d offset:%d' % (vT0, vE, LW - MX))
    stamp('softmax done')
    a('s_cmp_eq_u32 s%d, 7' % sW)
    a.save('roles')
    seq_roles = seq[0]
    a('s_cbranch_scc1 L_PWAVE')

    def v_phase(side):
        a.c('V phase')
        lead = max(cfg['win'], seq[0] - 32) if cfg['vstep'] else cfg['win']
        for u in range(16):
            v_upto(2 * u + lead, cfg['thr_v'])
            A, B = vslot(2 * u), vslot(2 * u + 1)
            for k in range(4):
                a('v_perm_b32 v%d, v%d, v%d, s%d' % (vU + 2 * k, B + k, A + k, sSELLO))
                a('v_perm_b32 v%d, v%d, v%d, s%d' % (vU + 2 * k + 1, B + k, A + k, sSELHI))
            for j in range(8):
                c = '0' if u == 0 else 'v%d' % (vACC + j)
                a('v_dot2_f32_bf16 v%d, v%d, v%d, %s' % (vACC + j, vU + j, vPP + u, c))
            for f in side.get(u, []):
                f()
            if u in (0, 7):
                stamp('V pair %d' % u)
        stamp('V done')

    def o_reduce():
        for j in range(4):
            a('v_permlane32_swap_b32 v%d, v%d' % (vACC + j, vACC + j + 4))
        for j in range(4):
            a('v_add_f32 v%d, v%d, v%d' % (vR + j, vACC + j, vACC + j + 4))
        a('ds_write_b128 v%d, %s' % (vLOW, vr(vR, 4)))
        a('v_and_b32 v%d, 7, v%d' % (vT0, vL))
        a('v_lshlrev_b32 v%d, 2, v%d' % (vT0, vT0))
        a('s_waitcnt lgkmcnt(0)')
        a('s_barrier')
        stamp('B3')
        vO = 48
        a('ds_read_b32 v52, v%d offset:%d' % (vT0, MX))
        a('ds_read_b32 v%d, v%d offset:%d' % (vM + 1, vT0, LW))
        a('ds_read_b128 %s, v%d' % (vr(vO, 4), vLOR))
        a('v_max_f32_dpp v%d, v52, v52 quad_perm:[1,0,3,2] row_mask:0xf bank_mask:0xf' % vM)
        a('v_max_f32_dpp v%d, v%d, v%d quad_perm:[2,3,0,1] row_mask:0xf bank_mask:0xf' % (vM, vM, vM))
        a('v_max_f32_dpp v%d, v%d, v%d row_half_mirror row_mask:0xf bank_mask:0xf' % (vM, vM, vM))
        a('v_sub_f32 v53, v52, v%d' % vM)
        a('v_mul_f32 v53, %s, v53' % CS)
        a('v_exp_f32 v53, v53')
        five = [vM + 1, vO, vO + 1, vO + 2, vO + 3]
        for r in five:
            a('v_mul_f32 v%d, v%d, v53' % (r, r))
        for ctl in ('quad_perm:[1,0,3,2]', 'quad_perm:[2,3,0,1]', 'row_half_mirror'):
            for r in five:
                a('v_add_f32_dpp v%d, v%d, v%d %s row_mask:0xf bank_mask:0xf' % (r, r, r, ctl))
        a('s_mov_b32 exec_lo, 0x01010101')
        a('s_mov_b32 exec_hi, 0x01010101')
        a('global_store_dwordx4 v%d, %s, %s sc1' % (vAO, vr(vO, 4), sr(pWS, 2)))
        a('s_mov_b64 exec, 1')
        a('global_store_dwordx2 v%d, %s, %s sc1' % (vAML, vr(vM, 2), sr(pWS, 2)))
        a('s_mov_b64 exec, -1')
        stamp('o published')
        if cfg['stop'] == 'pub':
            a('s_branch L_FIN')

    def m_setup():
        a.c('wo / w2 descriptor')
        a('s_lshl_b32 s%d, s%d, 8' % (sT1, sH))
        a('s_lshl_b32 s%d, s%d, 5' % (sWQO, sC))
        a('s_add_u32 s%d, s%d, s%d' % (sT1, sT1, sWQO))
        a('s_min_u32 s%d, s%d, 111' % (sT2, sN))
        a('s_lshl_b32 s%d, s%d, 4' % (sT2, sT2))
        a('s_cmp_lt_u32 s%d, 112' % sN)
        a('s_cselect_b32 s%d, %d, 0' % (sWQO, 15 * 896 + 128))
        a('s_cmp_eq_u32 s%d, 0' % sB)
        a('s_cselect_b32 s%d, s%d, s%d' % (sT1, sT1, sT2))
        a('s_cselect_b32 s%d, %d, s%d' % (rWO + 2, 31 * 896 + 128, sWQO))
        a('s_cselect_b32 s%d, s%d, s%d' % (rWO, pWO, pW2))
        a('s_cselect_b32 s%d, s%d, s%d' % (rWO + 1, pWO + 1, pW2 + 1))
        a('s_mul_i32 s%d, s%d, 896' % (sT1, sT1))
        a('s_lshl_b32 s%d, s%d, 7' % (sT2, sW))
        a('s_add_u32 s%d, s%d, s%d' % (sT1, sT1, sT2))
        a('s_add_u32 s%d, s%d, s%d' % (rWO, rWO, sT1))
        a('s_addc_u32 s%d, s%d, 0' % (rWO + 1, rWO + 1))
        a('s_mov_b32 s%d, 0x00020000' % (rWO + 3))

    def ld_wo():
        a('v_lshrrev_b32 v%d, 3, v%d' % (vT0, vL))
        a('v_and_b32 v%d, 7, v%d' % (vT1, vL))
        a('v_lshlrev_b32 v%d, 4, v%d' % (vT1, vT1))
        a('v_mul_u32_u24 v%d, 3584, v%d' % (vT2, vT0))
        a('v_add_u32 v%d, v%d, v%d' % (vT2, vT2, vT1))
        for k in range(4):
            a('buffer_load_dwordx4 %s, v%d, %s, 0 offen offset:%d%s' % (vr(vWO + 4 * k, 4), vT2, sr(rWO, 4), 896 * k, NWO))

    WP = [[None] * 8, [None] * 8]

    def do_wop():
        a.c('wo pre-permute')
        spare = vSP
        for p in range(2):
            A, B = vWO + 8 * p, vWO + 8 * p + 4
            for k in range(4):
                a('v_perm_b32 v%d, v%d, v%d, s%d' % (spare, B + k, A + k, sSELLO))
                a('v_perm_b32 v%d, v%d, v%d, s%d' % (B + k, B + k, A + k, sSELHI))
                WP[p][2 * k] = spare
                WP[p][2 * k + 1] = B + k
                spare = A + k

    m_setup()
    side = {}
    for key, f in (('p_wo', ld_wo),):
        if cfg[key] < 0:
            f()
        else:
            side.setdefault(cfg[key], []).append(f)
    v_phase(side)
    o_reduce()
    do_wop()
    a('v_lshrrev_b32 v%d, 3, v%d' % (vT0, vL))
    a('v_lshlrev_b32 v%d, 4, v%d' % (vT0, vT0))
    a('s_barrier')
    a('ds_read_b128 v[72:75], v%d offset:%d' % (vT0, OCB))
    for j in range(8):
        a('v_dot2_f32_bf16 v%d, v%d, v72, 0' % (A0 + j, WP[0][j]))
    for j in range(8):
        a('v_dot2_f32_bf16 v%d, v%d, v74, 0' % (A1 + j, WP[0][j]))
    for j in range(8):
        a('v_dot2_f32_bf16 v%d, v%d, v73, v%d' % (A0 + j, WP[1][j], A0 + j))
    for j in range(8):
        a('v_dot2_f32_bf16 v%d, v%d, v75, v%d' % (A1 + j, WP[1][j], A1 + j))
    two_batch_reduce()
    a('s_mov_b32 exec_lo, 0x00ff00ff')
    a('s_mov_b32 exec_hi, 0x00ff00ff')
    a('global_store_dwordx4 v%d, %s, %s sc1' % (vAY, vr(A0, 4), sr(pWS, 2)))
    a('s_mov_b64 exec, -1')
    stamp('y published')
    a('s_branch L_FIN')

    a.label('L_PWAVE')
    a.restore('roles')
    seq[0] = seq_roles
    a('s_cmp_eq_u32 s%d, 0' % sB)
    a('s_cbranch_scc1 L_PA')

    def h_sample():
        a('s_min_u32 s%d, s%d, 111' % (sT1, sN))
        a('s_lshr_b32 s%d, s%d, 2' % (sT2, sT1))
        a('s_lshl_b32 s%d, s%d, 2' % (sT2, sT2))
        a('s_add_u32 s%d, s%d, %d' % (sT2, sT2, HCNT))
        a('v_mov_b32 v%d, s%d' % (vHA, sT2))
        a('global_load_dword v%d, v%d, %s sc1' % (vHC, vHA, sr(pDBG, 2)))

    def h_check():
        a('s_min_u32 s%d, s%d, 111' % (sT1, sN))
        a('s_lshr_b32 s%d, s%d, 2' % (sT2, sT1))
        a('s_lshl_b32 s%d, s%d, 11' % (sT2, sT2))
        a('s_and_b32 s%d, s%d, 3' % (sWQO, sT1))
        a('s_lshl_b32 s%d, s%d, 6' % (sWQO, sWQO))
        a('s_add_u32 s%d, s%d, s%d' % (sT2, sT2, sWQO))
        a('s_add_u32 s%d, s%d, %d' % (sT2, sT2, HREG))
        a('s_lshl_b32 s%d, s%d, 5' % (sT1, sT1))
        srd(rB1, pB1, sT1, '32')
        a('v_bfe_u32 v%d, v%d, 2, 3' % (vT0, vL))
        a('v_and_b32 v%d, 3, v%d' % (vT1, vL))
        a('v_lshlrev_b32 v%d, 8, v%d' % (vT0, vT0))
        a('v_lshl_add_u32 v%d, v%d, 4, v%d' % (vT0, vT1, vT0))
        a('v_add_u32 v%d, s%d, v%d' % (vT0, sT2, vT0))
        a('v_bfe_u32 v%d, v%d, 4, 1' % (vT2, vL))
        a('v_lshlrev_b32 v%d, 2, v%d' % (vT2, vT2))
        a('v_lshl_add_u32 v%d, v%d, 3, v%d' % (vT1, vT1, vT2))
        a('v_cmp_ne_u32 vcc, 4, v%d' % vHC)
        a.save('hchk')
        a('s_cbranch_vccnz L_HCHK_SLOW')
        a.label('L_HCHK_OK')
        stamp('h counter ok')
        a('global_load_dwordx4 %s, v%d, %s sc1' % (vr(vHG, 4), vT0, sr(pWS, 2)))
        a('buffer_load_dword v%d, v%d, %s, 0 offen%s' % (vB1, vT1, sr(rB1, 4), NW))

    def h_finish():
        a.c('hidden units: h = gelu(bf16(x@w1)+b1)')
        g0 = vHG
        for j in range(4):
            a('v_add_f32_dpp v%d, v%d, v%d row_ror:8 row_mask:0xf bank_mask:0xf' % (g0 + j, g0 + j, g0 + j))
        a('v_permlane16_swap_b32 v%d, v%d' % (g0, g0 + 2))
        a('v_permlane16_swap_b32 v%d, v%d' % (g0 + 1, g0 + 3))
        a('v_add_f32 v%d, v%d, v%d' % (g0, g0, g0 + 2))
        a('v_add_f32 v%d, v%d, v%d' % (g0 + 1, g0 + 1, g0 + 3))
        h0, h1 = g0, g0 + 1
        t0_, t1_ = vT, vT + 1
        a('v_cvt_pk_bf16_f32 v%d, v%d, v%d' % (t0_, h0, h1))
        a('v_lshlrev_b32 v%d, 16, v%d' % (h0, t0_))
        a('v_and_b32 v%d, 0xffff0000, v%d' % (h1, t0_))
        a('v_lshlrev_b32 v%d, 16, v%d' % (t0_, vB1))
        a('v_and_b32 v%d, 0xffff0000, v%d' % (t1_, vB1))
        a('v_add_f32 v%d, v%d, v%d' % (h0, h0, t0_))
        a('v_add_f32 v%d, v%d, v%d' % (h1, h1, t1_))
        a('v_cvt_pk_bf16_f32 v%d, v%d, v%d' % (t0_, h0, h1))
        a('v_lshlrev_b32 v%d, 16, v%d' % (h0, t0_))
        a('v_and_b32 v%d, 0xffff0000, v%d' % (h1, t0_))
        C1 = -2.0 * LOG2E * 0.7978845608028654
        C2 = C1 * 0.044715
        a('s_mov_b32 s%d, %s' % (sT1, f2h(C2)))
        a('s_mov_b32 s%d, %s' % (sT2, f2h(C1)))
        for hh, tt in ((h0, t0_), (h1, t1_)):
            a('v_mul_f32 v%d, v%d, v%d' % (tt, hh, hh))
        for hh, tt in ((h0, t0_), (h1, t1_)):
            a('v_mul_f32 v%d, s%d, v%d' % (tt, sT1, tt))
        for hh, tt in ((h0, t0_), (h1, t1_)):
            a('v_add_f32 v%d, s%d, v%d' % (tt, sT2, tt))
        for hh, tt in ((h0, t0_), (h1, t1_)):
            a('v_mul_f32 v%d, v%d, v%d' % (tt, tt, hh))
        for hh, tt in ((h0, t0_), (h1, t1_)):
            a('v_exp_f32 v%d, v%d' % (tt, tt))
        for hh, tt in ((h0, t0_), (h1, t1_)):
            a('v_add_f32 v%d, 1.0, v%d' % (tt, tt))
        for hh, tt in ((h0, t0_), (h1, t1_)):
            a('v_rcp_f32 v%d, v%d' % (tt, tt))
        for hh, tt in ((h0, t0_), (h1, t1_)):
            a('v_mul_f32 v%d, v%d, v%d' % (hh, hh, tt))
        a('v_cvt_pk_bf16_f32 v%d, v%d, v%d' % (h0, h0, h1))
        a('v_and_b32 v%d, 3, v%d' % (vT0, vL))
        a('v_lshlrev_b32 v%d, 4, v%d' % (vT0, vT0))
        a('v_bfe_u32 v%d, v%d, 2, 1' % (vT1, vL))
        a('v_lshl_add_u32 v%d, v%d, 3, v%d' % (vT0, vT1, vT0))
        a('v_bfe_u32 v%d, v%d, 3, 1' % (vT1, vL))
        a('v_lshl_add_u32 v%d, v%d, 6, v%d' % (vT0, vT1, vT0))
        a('v_bfe_u32 v%d, v%d, 4, 1' % (vT1, vL))
        a('v_lshl_add_u32 v%d, v%d, 2, v%d' % (vT0, vT1, vT0))
        a('s_mov_b32 exec_lo, 0xff00ff00')
        a('s_mov_b32 exec_hi, 0')
        a('v_mov_b32 v%d, 0' % h0)
        a('s_mov_b32 exec_lo, -1')
        a('ds_write_b32 v%d, v%d offset:%d' % (vT0, h0, OCB))
        a('s_mov_b64 exec, -1')
        stamp('h done')

    side = {}
    for key, f in (('p_hs', h_sample), ('p_hc', h_check), ('p_hg', h_finish)):
        side.setdefault(cfg[key], []).append(f)
    v_phase(side)
    o_reduce()
    a('s_barrier')
    a('s_branch L_FIN')

    a.label('L_PA')
    a.restore('roles')
    seq[0] = seq_roles

    def ld_gate():
        a('s_mul_i32 s%d, s%d, 896' % (sT1, sBR))
        a('s_cmp_lt_u32 s%d, 56' % sN)
        a('s_cselect_b32 s%d, 896, 0' % sT2)
        srd(rX, pX, sT1, 's%d' % sT2)
        srd(rG, pG, None, 's%d' % sT2)
        srd(rB2, pB2, None, 's%d' % sT2)
        a('buffer_load_dwordx4 %s, v%d, %s, 0 offen%s' % (vr(vXG, 4), vO16, sr(rX, 4), NW))
        a('buffer_load_dwordx4 %s, v%d, %s, 0 offen%s' % (vr(vGW, 4), vO16, sr(rG, 4), NW))
        a('s_lshl_b32 s%d, s%d, 5' % (sT1, sJ))
        a('v_lshrrev_b32 v%d, 4, v%d' % (vT0, vL))
        a('v_lshlrev_b32 v%d, 3, v%d' % (vT0, vT0))
        a('buffer_load_dwordx2 %s, v%d, %s, s%d offen%s' % (vr(vB2, 2), vT0, sr(rB2, 4), sT1, NW))
        a('v_add_u32 v%d, 4096, v%d' % (vPA, vPY))
        a('v_add_u32 v%d, %d, v%d' % (vPA + 1, FREG - YREG, vPY))
        a('v_add_u32 v%d, %d, v%d' % (vPA + 2, FREG - YREG + 4096, vPY))

    def do_gate():
        a.c('gate')
        ta, tb, tc, td = vT, vT + 1, vT + 2, vT + 3
        vZ = vT + 4
        a('s_mov_b32 s%d, 0x3f803f80' % sT2)
        for k in range(4):
            a('v_lshlrev_b32 v%d, 16, v%d' % (ta, vXG + k))
            a('v_lshlrev_b32 v%d, 16, v%d' % (tb, vGW + k))
            a('v_and_b32 v%d, 0xffff0000, v%d' % (tc, vXG + k))
            a('v_and_b32 v%d, 0xffff0000, v%d' % (td, vGW + k))
            a('v_mul_f32 v%d, v%d, v%d' % (ta, ta, tb))
            a('v_mul_f32 v%d, v%d, v%d' % (tc, tc, td))
            a('v_cvt_pk_bf16_f32 v%d, v%d, v%d' % (ta, ta, tc))
            a('v_dot2_f32_bf16 v%d, v%d, s%d, %s' % (vZ, ta, sT2, '0' if k == 0 else 'v%d' % vZ))
        allred('v_add_f32', vZ, ta)
        rnd_bf16(vZ, vZ)
        a('v_mul_f32 v%d, %s, v%d' % (vZ, f2h(-LOG2E), vZ))
        a('v_exp_f32 v%d, v%d' % (vZ, vZ))
        a('v_add_f32 v%d, 1.0, v%d' % (vZ, vZ))
        a('v_rcp_f32 v%d, v%d' % (vZ, vZ))
        rnd_bf16(vG, vZ)
        a('v_sub_f32 v%d, 1.0, v%d' % (vOMG, vG))
        rnd_bf16(vOMG, vOMG)
        a('v_lshlrev_b32 v%d, 16, v%d' % (vB2F, vB2))
        a('v_and_b32 v%d, 0xffff0000, v%d' % (vB2F + 1, vB2))
        a('v_lshlrev_b32 v%d, 16, v%d' % (vB2F + 2, vB2 + 1))
        a('v_and_b32 v%d, 0xffff0000, v%d' % (vB2F + 3, vB2 + 1))

    def ld_chk():
        a('v_and_b32 v%d, 31, v%d' % (vT0, vL))
        a('v_lshlrev_b32 v%d, 2, v%d' % (vT0, vT0))
        a('v_add_u32 v%d, %d, v%d' % (vSPARE, CNT, vT0))
        a('global_load_dword v%d, v%d, %s sc1' % (vCHK, vSPARE, sr(pDBG, 2)))

    side = {}
    for key, f in (('p_g', ld_gate), ('chk_u', ld_chk), ('p_gc', do_gate)):
        side.setdefault(cfg[key], []).append(f)
    v_phase(side)
    o_reduce()

    a.c('hop 1')
    a('s_mov_b32 s%d, %d' % (sSPIN, cfg['spin']))
    vPo = (64, 68)
    vPm = (72, 74)
    a.label('L_POLL1')
    if cfg['sleep1']:
        a('s_sleep %d' % cfg['sleep1'])
    a('global_load_dwordx4 %s, v%d, %s sc1' % (vr(vPo[0], 4), vPO, sr(pWS, 2)))
    a('global_load_dwordx4 %s, v%d, %s offset:1024 sc1' % (vr(vPo[1], 4), vPO, sr(pWS, 2)))
    a('global_load_dwordx2 %s, v%d, %s sc1' % (vr(vPm[0], 2), vPML, sr(pWS, 2)))
    a('global_load_dwordx2 %s, v%d, %s offset:64 sc1' % (vr(vPm[1], 2), vPML, sr(pWS, 2)))
    a('s_sub_u32 s%d, s%d, 1' % (sSPIN, sSPIN))
    a('s_cmp_eq_u32 s%d, 0' % sSPIN)
    a('s_waitcnt vmcnt(0)')
    a('s_cbranch_scc1 L_POLL1_DONE')
    a('v_max3_u32 v76, v64, v65, v66')
    a('v_max3_u32 v77, v67, v68, v69')
    a('v_max3_u32 v76, v76, v70, v71')
    a('v_max3_u32 v77, v77, v72, v73')
    a('v_max3_u32 v76, v76, v74, v75')
    a('v_max_u32 v76, v76, v77')
    a('v_cmp_eq_u32 vcc, -1, v76')
    a('s_cbranch_vccnz L_POLL1')
    a.label('L_POLL1_DONE')
    a('s_nop 0')
    a.assume_drained()
    stamp('hop1 data')
    Mx, w_, L_ = (76, 77), (78, 79), (80, 81)
    for ctl in ('quad_perm:[1,0,3,2]', 'quad_perm:[2,3,0,1]', 'row_half_mirror'):
        for bb in range(2):
            src = vPm[bb] if ctl == 'quad_perm:[1,0,3,2]' else Mx[bb]
            a('v_max_f32_dpp v%d, v%d, v%d %s row_mask:0xf bank_mask:0xf' % (Mx[bb], src, src, ctl))
    for bb in range(2):
        a('v_sub_f32 v%d, v%d, v%d' % (w_[bb], vPm[bb], Mx[bb]))
    for bb in range(2):
        a('v_mul_f32 v%d, %s, v%d' % (w_[bb], CS, w_[bb]))
    for bb in range(2):
        a('v_exp_f32 v%d, v%d' % (w_[bb], w_[bb]))
    for bb in range(2):
        a('v_mul_f32 v%d, v%d, v%d' % (L_[bb], vPm[bb] + 1, w_[bb]))
    for bb in range(2):
        for j in range(4):
            a('v_mul_f32 v%d, v%d, v%d' % (vPo[bb] + j, vPo[bb] + j, w_[bb]))
    ten = [L_[0], L_[1]] + [vPo[0] + j for j in range(4)] + [vPo[1] + j for j in range(4)]
    for ctl in ('quad_perm:[1,0,3,2]', 'quad_perm:[2,3,0,1]', 'row_half_mirror'):
        for r in ten:
            a('v_add_f32_dpp v%d, v%d, v%d %s row_mask:0xf bank_mask:0xf' % (r, r, r, ctl))
    for bb in range(2):
        a('v_rcp_f32 v%d, v%d' % (L_[bb], L_[bb]))
    a('v_lshrrev_b32 v%d, 3, v%d' % (vT0, vL))
    a('v_lshlrev_b32 v%d, 4, v%d' % (vT0, vT0))
    for bb in range(2):
        for j in range(4):
            a('v_mul_f32 v%d, v%d, v%d' % (vPo[bb] + j, vPo[bb] + j, L_[bb]))
    a('v_cvt_pk_bf16_f32 v72, v64, v65')
    a('v_cvt_pk_bf16_f32 v73, v66, v67')
    a('v_cvt_pk_bf16_f32 v74, v68, v69')
    a('v_cvt_pk_bf16_f32 v75, v70, v71')
    a('s_mov_b32 exec_lo, 0x01010101')
    a('s_mov_b32 exec_hi, 0x01010101')
    a('ds_write_b128 v%d, v[72:75] offset:%d' % (vT0, OCB))
    a('s_mov_b64 exec, -1')
    a('s_waitcnt lgkmcnt(0)')
    a('s_barrier')
    stamp('B4')
    a('s_cmp_ge_u32 s%d, 56' % sN)
    a('s_cbranch_scc1 L_FIN')
    a('v_cmp_ne_u32 vcc, 8, v%d' % vCHK)
    a.save('chk')
    a('s_cbranch_vccnz L_CHK_SLOW')
    a.label('L_CHK_OK')
    FB, YG = 64, 96

    def gather(base, va, vb):
        for k in range(8):
            a('global_load_dwordx4 %s, v%d, %s offset:%d sc1' % (vr(base + 4 * k, 4), va if k < 4 else vb, sr(pWS, 2), (k % 4) * 1024))

    def invalid(base):
        a('v_max3_u32 v48, v%d, v%d, v%d' % (base, base + 1, base + 2))
        a('v_max3_u32 v49, v%d, v%d, v%d' % (base + 3, base + 4, base + 5))
        for k in range(base + 6, base + 30, 4):
            a('v_max3_u32 v48, v48, v%d, v%d' % (k, k + 1))
            a('v_max3_u32 v49, v49, v%d, v%d' % (k + 2, k + 3))
        a('v_max3_u32 v48, v48, v%d, v%d' % (base + 30, base + 31))
        a('v_max_u32 v48, v48, v49')
        a('v_cmp_eq_u32 vcc, -1, v48')

    def tree(base):
        for step in (16, 8, 4):
            for b_ in range(base, base + step, 4):
                for j in range(4):
                    a('v_add_f32 v%d, v%d, v%d' % (b_ + j, b_ + j, b_ + step + j))
        for n in (8, 4, 2, 1):
            for j in range(4):
                a('v_add_f32_dpp v%d, v%d, v%d row_ror:%d row_mask:0xf bank_mask:0xf' % (base + j, base + j, base + j, n))

    def f_sum():
        tree(FB)
        for rep in range(3):
            if rep == 1:
                for j in range(4):
                    a('v_add_f32 v%d, v%d, v%d' % (FB + j, FB + j, vB2F + j))
            if rep == 2:
                for j in range(4):
                    a('v_mul_f32 v%d, v%d, v%d' % (FB + j, FB + j, vOMG))
            a('v_cvt_pk_bf16_f32 v%d, v%d, v%d' % (FB + 4, FB, FB + 1))
            a('v_cvt_pk_bf16_f32 v%d, v%d, v%d' % (FB + 5, FB + 2, FB + 3))
            a('v_lshlrev_b32 v%d, 16, v%d' % (FB, FB + 4))
            a('v_and_b32 v%d, 0xffff0000, v%d' % (FB + 1, FB + 4))
            a('v_lshlrev_b32 v%d, 16, v%d' % (FB + 2, FB + 5))
            a('v_and_b32 v%d, 0xffff0000, v%d' % (FB + 3, FB + 5))

    a('s_mov_b32 s%d, %d' % (sSPIN, cfg['spin']))
    a.label('L_POLLF')
    if cfg['sleep2']:
        a('s_sleep %d' % cfg['sleep2'])
    gather(FB, vPA + 1, vPA + 2)
    gather(YG, vPY, vPA)
    a('s_sub_u32 s%d, s%d, 1' % (sSPIN, sSPIN))
    a('s_cmp_eq_u32 s%d, 0' % sSPIN)
    a('s_waitcnt vmcnt(8)')
    a('s_cbranch_scc1 L_POLLF_DONE')
    invalid(FB)
    a('s_waitcnt vmcnt(0)')
    a('s_cbranch_vccnz L_POLLF')
    a.label('L_POLLF_DONE')
    a('s_waitcnt vmcnt(0)')
    a.assume_drained()
    stamp('f data')
    invalid(YG)
    a('s_cbranch_vccnz L_POLLY0')
    f_sum()
    a('s_branch L_POLLY_DONE')
    a.label('L_POLLY0')
    gather(YG, vPY, vPA)
    a.save('py0')
    f_sum()
    a.restore('py0')
    a('s_mov_b32 s%d, %d' % (sSPIN, cfg['spin']))
    a.label('L_POLLY')
    a('s_waitcnt vmcnt(0)')
    a.assume_drained()
    invalid(YG)
    a('s_sub_u32 s%d, s%d, 1' % (sSPIN, sSPIN))
    a('s_cbranch_vccz L_POLLY_DONE')
    a('s_cmp_eq_u32 s%d, 0' % sSPIN)
    a('s_cbranch_scc1 L_POLLY_DONE')
    if cfg['sleep2']:
        a('s_sleep %d' % cfg['sleep2'])
    gather(YG, vPY, vPA)
    a('s_branch L_POLLY')
    a.label('L_POLLY_DONE')
    a.assume_drained()
    a('s_nop 1')
    stamp('hop2 data')
    tree(YG)
    for j in range(4):
        a('v_fma_f32 v%d, v%d, v%d, v%d' % (YG + j, YG + j, vG, FB + j))
    a('v_cvt_pk_bf16_f32 v%d, v%d, v%d' % (YG, YG, YG + 1))
    a('v_cvt_pk_bf16_f32 v%d, v%d, v%d' % (YG + 1, YG + 2, YG + 3))
    a('s_mul_i32 s%d, s%d, 896' % (sT1, sBR))
    a('s_lshl_b32 s%d, s%d, 5' % (sT2, sJ))
    a('s_add_u32 s%d, s%d, s%d' % (sT1, sT1, sT2))
    a('v_lshrrev_b32 v%d, 4, v%d' % (vT0, vL))
    a('v_lshl_add_u32 v%d, v%d, 3, s%d' % (vT0, vT0, sT1))
    a('s_mov_b32 exec_lo, 0x00010001')
    a('s_mov_b32 exec_hi, 0x00010001')
    a('global_store_dwordx2 v%d, %s, %s' % (vT0, vr(YG, 2), sr(pOUT, 2)))
    a('s_mov_b64 exec, -1')
    stamp('out stored')

    a.label('L_FIN')
    if cfg['stamps']:
        a('s_nop 4')
        a('s_memrealtime s[100:101]')
        a('s_waitcnt lgkmcnt(0)')
        a('v_writelane_b32 v31, s100, 63')
        a('s_lshl_b32 s94, s2, 3')
        a('s_add_u32 s94, s94, s%d' % sW)
        a('s_lshl_b32 s94, s94, 8')
        a('s_add_u32 s94, s94, %d' % STREG)
        a('v_lshl_add_u32 v30, v%d, 2, s94' % vL)
        a('global_store_dword v30, v31, %s' % sr(pWS, 2))
    a('s_endpgm')

    def slow_cnt(name, back, key, vdst, vaddr, want):
        a.label(name)
        a.restore(key)
        a('s_mov_b32 s%d, %d' % (sSPIN, cfg['spin']))
        a.label(name + '_LOOP')
        if cfg['sleep']:
            a('s_sleep %d' % cfg['sleep'])
        a('global_load_dword v%d, v%d, %s sc1' % (vdst, vaddr, sr(pDBG, 2)))
        a('s_sub_u32 s%d, s%d, 1' % (sSPIN, sSPIN))
        a('s_cmp_eq_u32 s%d, 0' % sSPIN)
        a('s_waitcnt vmcnt(0)')
        a('s_cbranch_scc1 %s' % back)
        a('v_cmp_ne_u32 vcc, %d, v%d' % (want, vdst))
        a('s_cbranch_vccnz %s_LOOP' % name)
        a('s_branch %s' % back)
    slow_cnt('L_CHK_SLOW', 'L_CHK_OK', 'chk', vCHK, vSPARE, 8)
    slow_cnt('L_QCHK_SLOW', 'L_QCHK_OK', 'qchk', vT1, vT2, 8)
    slow_cnt('L_HCHK_SLOW', 'L_HCHK_OK', 'hchk', vHC, vHA, 4)
    a.label('L_QPOLL_SLOW')
    a.restore('qpoll')
    a('s_mov_b32 s%d, %d' % (sSPIN, cfg['spin']))
    a.label('L_QPOLL_LOOP')
    if cfg['sleep']:
        a('s_sleep %d' % cfg['sleep'])
    for k in range(4):
        a('global_load_dwordx4 %s, v%d, %s offset:%d sc1' % (vr(vT + 4 * k, 4), vQP, sr(pWS, 2), 1024 * k))
    a('s_sub_u32 s%d, s%d, 1' % (sSPIN, sSPIN))
    a('s_cmp_eq_u32 s%d, 0' % sSPIN)
    a('s_waitcnt vmcnt(0)')
    a('s_cbranch_scc1 L_QPOLL_OK')
    a('v_max3_u32 v44, v48, v49, v50')
    a('v_max3_u32 v45, v51, v52, v53')
    a('v_max3_u32 v46, v54, v55, v56')
    a('v_max3_u32 v47, v57, v58, v59')
    a('v_max3_u32 v44, v44, v60, v61')
    a('v_max3_u32 v45, v45, v62, v63')
    a('v_max3_u32 v44, v44, v46, v47')
    a('v_max_u32 v44, v44, v45')
    a('v_cmp_eq_u32 vcc, -1, v44')
    a('s_cbranch_vccnz L_QPOLL_LOOP')
    a('s_branch L_QPOLL_OK')
    a.label('L_END')
    body = a.finalize()
    return body


HEADER = open('cdna_kernels/%s.s.ref' % NAME).read().split('; Override launch geometry')[0]


def wrap(body, cfg):
    s = HEADER
    s += '; Override launch geometry by editing the next line (default: block=256,\n'
    s += '; grid=ceil(out_elems/256), lds=0). Harness parses it; keep it on one line.\n'
    s += '; @launch grid=(256,1,1) block=(512,1,1) lds=%d\n' % LDS_BYTES
    s += '.amdgcn_target "amdgcn-amd-amdhsa--gfx950"\n.text\n.globl %s_kernel\n.p2align 8\n' % NAME
    s += '.type %s_kernel,@function\n%s_kernel:\n' % (NAME, NAME)
    s += body
    s += 's_endpgm\n'
    s += '.section .rodata,"a"\n.p2align 6\n.amdhsa_kernel %s_kernel\n' % NAME
    s += '  .amdhsa_next_free_vgpr 256\n  .amdhsa_next_free_sgpr 102\n  .amdhsa_accum_offset 256\n'
    s += '  .amdhsa_group_segment_fixed_size 0\n  .amdhsa_kernarg_size 112\n  .amdhsa_user_sgpr_count 2\n'
    s += '  .amdhsa_user_sgpr_kernarg_segment_ptr 1\n  .amdhsa_system_sgpr_workgroup_id_x 1\n.end_amdhsa_kernel\n'
    return s


def build(out, **kw):
    cfg = dict(DEFAULT)
    for k in kw:
        assert k in cfg, k
    cfg.update(kw)
    s = wrap(gen(cfg), cfg)
    open(out, 'w').write(s)
    return s


if __name__ == '__main__':
    out = sys.argv[1] if len(sys.argv) > 1 else 'cdna_kernels/%s.s' % NAME
    kw = {}
    for arg in sys.argv[2:]:
        k, v = arg.split('=')
        kw[k] = eval(v)
    build(out, **kw)
    print('wrote', out)
```
